```python
import torch

def _softmax(x, axis=-1):
    return torch.softmax(x, dim=axis)
def _gelu(x):
    return torch.nn.functional.gelu(x, approximate="tanh")
def _silu(x):
    return torch.nn.functional.silu(x)
def _sigmoid(x):
    return torch.sigmoid(x)
def _layernorm(x, axis=-1, eps=1e-5):
    m = x.mean(dim=axis, keepdim=True)
    v = x.var(dim=axis, keepdim=True, unbiased=False)
    return (x - m) / torch.sqrt(v + eps)
def _scatter_add(tgt, idx, src, axis=0):
    return tgt.clone().index_add_(axis, idx, src)
def _segment_sum(src, seg, n):
    out = torch.zeros((n,) + src.shape[1:], dtype=src.dtype)
    return out.index_add_(0, seg, src)
def _pad(x, pw):
    flat = tuple(v for pair in reversed(pw) for v in pair)
    return torch.nn.functional.pad(x, flat)

kernel_name = 'concat_heads__sliding_local_dilated__ssm_conv_h3__prompt'

def setup_inputs():

    _w = (lambda a: (lambda t: t.to(torch.bfloat16) if t.is_floating_point() else t)(torch.as_tensor(a)))
    def _A_setup():
        B, S, D = 1, 2048, 640
        return {
            "x": _w((lambda *s: torch.randn(*s, dtype=torch.bfloat16) * 0.2)(B, S, D)),
            "wqkv": _w((lambda *s: torch.randn(*s, dtype=torch.bfloat16) * 0.2)(D, 3 * D)),
            "wo": _w((lambda *s: torch.randn(*s, dtype=torch.bfloat16) * 0.05)(D, D)),
        }
    _A_in = _A_setup()

    def _B_setup():
        B, S, D = 1, 2048, 640
        ks = 4
        return {
            "q": _w((lambda *s: torch.randn(*s, dtype=torch.bfloat16) * 0.05)(B, S, D)),
            "k": _w((lambda *s: torch.randn(*s, dtype=torch.bfloat16) * 0.8)(B, S, D)),
            "v": _w((lambda *s: torch.randn(*s, dtype=torch.bfloat16) * 0.8)(B, S, D)),
            "shift_k": _w((lambda *s: torch.randn(*s, dtype=torch.bfloat16) * 0.8)(D, ks) * 0.5),
            "ssm_k": _w((lambda *s: torch.randn(*s, dtype=torch.bfloat16) * 3.2)(D, S) * (1.0 / S ** 0.5)),
            "ssm_D": _w((lambda *s: torch.randn(*s, dtype=torch.bfloat16) * 0.8)(D)),
        }
    _B_in = _B_setup()

    return {
        "A_x": _A_in["x"],
        "A_wqkv": _A_in["wqkv"],
        "A_wo": _A_in["wo"],
        "B_q": _B_in["q"],
        "B_k": _B_in["k"],
        "B_v": _B_in["v"],
        "B_shift_k": _B_in["shift_k"],
        "B_ssm_k": _B_in["ssm_k"],
        "B_ssm_D": _B_in["ssm_D"],
    }

def reference(A_x, A_wqkv, A_wo, B_q, B_k, B_v, B_shift_k, B_ssm_k, B_ssm_D):
    def _A_ref(x, wqkv, wo):
        B, S, D = x.shape
        H = 32; Dh = D // H
        W, dil = 8, 2
        qkv = (lambda x, *d: x.permute(*d))((x @ wqkv).reshape(B, S, 3, H, Dh), 2, 0, 3, 1, 4)
        q, k, v = qkv[0], qkv[1], qkv[2]
        scale = Dh ** -0.5
        pos = torch.arange(S)
        off = torch.arange(W) * dil
        idx = pos[:, None] - off[None, :]
        mask = idx >= 0
        idx_c = torch.where(mask, idx, 0).reshape(-1)
        kg = k[:, :, idx_c, :].reshape(B, H, S, W, Dh)
        vg = v[:, :, idx_c, :].reshape(B, H, S, W, Dh)
        logits = torch.einsum("bhsd,bhswd->bhsw", q, kg) * scale
        logits = torch.where(mask[None, None, :, :], logits, -1e9)
        attn = _softmax(logits, axis=-1)
        o = torch.einsum("bhsw,bhswd->bhsd", attn, vg)
        return (lambda x, *d: x.permute(*d))(o, 0, 2, 1, 3).reshape(B, S, D) @ wo

    def _B_ref(q, k, v, shift_k, ssm_k, ssm_D):
        B, S, D = q.shape
        ks = shift_k.shape[-1]
        k_pad = _pad(k, ((0, 0), (ks - 1, 0), (0, 0)))
        k_shift = torch.zeros_like(k)
        for t in range(ks):
            k_shift = k_shift + k_pad[:, t:t + S, :] * shift_k[:, ks - 1 - t][None, None, :]
        kv = k_shift * v
        L = 2 * S
        kv_pad = _pad(kv, ((0, 0), (0, S), (0, 0)))
        kf_pad = _pad(ssm_k, ((0, 0), (0, S)))
        kv_f = (lambda x, axes=(-2,-1): torch.fft.rfft2(x.float(), dim=axes))(kv_pad[:, None, :, :], axes=(1, 2))
        kf_f = (lambda x, axes=(-2,-1): torch.fft.rfft2(x.float(), dim=axes))(kf_pad[:, None, :], axes=(1, 2))
        kf_f = (lambda x, *d: x.permute(*d))(kf_f, 1, 2, 0)
        y_f = kv_f * kf_f[None, :, :, :]
        y = (lambda x, s, axes=(-2,-1): torch.fft.irfft2(x, s=s, dim=axes).to(torch.bfloat16))(y_f, (1, L), axes=(1, 2))[:, 0, :S, :]
        y = y + kv * ssm_D[None, None, :]
        return q * y

    a = _A_ref(A_x, A_wqkv, A_wo)
    b = _B_ref(B_q, B_k, B_v, B_shift_k, B_ssm_k, B_ssm_D)
    return torch.concatenate([a, b], axis=-1)
```

```python
from common import *

S_RB, S_HP = 4, 5
SRD_X, SRD_W, SRD_O, SRD_OUT = 40, 44, 48, 52
S_T0, S_T1, S_T2, S_T3 = 57, 58, 59, 60
S_SW = [61, 62]
S_SX = [63, 64, 65, 66, 67]
S_WB, S_XB = 68, 69
S_X5 = [70, 71, 72]
S_XINC = 73
S_IT = 74
S_C = 75
S_M0, S_M1, S_M2 = 76, 78, 80

W_RING, W_SLOT = 0, 8192
X_RING, X_SLOT = 24576, 18432
DUMMY = 79872
NEG = -1.0e30

import struct


def f2u(x):
    return struct.unpack("<I", struct.pack("<f", x))[0]


def a_ids(a):
    a(f"s_sub_u32 s{S_T0}, s{S_WG}, {NB}")
    a(f"s_and_b32 s{S_T1}, s{S_T0}, 7")
    a(f"s_lshr_b32 s{S_T2}, s{S_T0}, 3")
    a(f"s_lshr_b32 s{S_RB}, s{S_T1}, 1")
    a(f"s_lshl_b32 s{S_RB}, s{S_RB}, 2")
    a(f"s_lshr_b32 s{S_T3}, s{S_T2}, 3")
    a(f"s_add_u32 s{S_RB}, s{S_RB}, s{S_T3}")
    a(f"s_and_b32 s{S_HP}, s{S_T1}, 1")
    a(f"s_lshl_b32 s{S_HP}, s{S_HP}, 3")
    a(f"s_and_b32 s{S_T3}, s{S_T2}, 7")
    a(f"s_add_u32 s{S_HP}, s{S_HP}, s{S_T3}")


FT = ["Q0", "Q1", "K0", "K1", "QKx", "V0", "V1", "Vx"]
FT_BASE = {"Q0": 0, "Q1": 40, "K0": 80, "K1": 120, "V0": 160, "V1": 200}
KTYPE = {"Q0", "Q1", "K0", "K1", "QKx"}


def gen_a1(a, sc1_st="", mid_hook=None):
    c = Ctx(a)
    al = Alloc(1, 256)
    vWd, vXd = al.get("wd"), al.get("xd")
    vWr = [al.get(f"wr{i}") for i in range(8)]
    vWh = [al.get(f"wh{i}") for i in range(2)]
    vXr = [al.get(f"xr{i}") for i in range(2)]
    vXh = [al.get(f"xh{i}") for i in range(2)]
    t0, t1, t2, t3, t4, t5 = (al.get(f"t{i}") for i in range(6))
    ACC = [[al.get(f"acc{T}_{f}", 4, 2) for f in range(8)] for T in range(2)]
    HAC = [al.get(f"hac{i}", 4, 2) for i in range(2)]
    fr0 = al.next + (al.next & 1)
    WF = [[al.get(f"wf{p}_{f}", 4, 2) for f in range(8)] for p in range(2)]
    WH = [[al.get(f"whf{p}_{f}", 4, 2) for f in range(2)] for p in range(2)]
    XF = [[al.get(f"xf{p}_{f}", 4, 2) for f in range(3)] for p in range(2)]
    fr1 = al.next

    make_srd(a, SRD_X, S_X, SZ)
    make_srd(a, SRD_W, S_WQKV, D * 3 * D * 2)
    make_srd(a, SRD_O, S_WS, SZ, add=OFF_O)

    a(f"v_lshrrev_b32 v{t0}, 4, v0")
    a(f"v_and_b32 v{t1}, 15, v0")
    a(f"s_bfe_u32 s{S_T0}, s{S_WAVE}, 0x10001")
    a(f"s_lshl_b32 s{S_T0}, s{S_T0}, 3")
    a(f"v_lshl_add_u32 v{t2}, v{t0}, 1, s{S_T0}")
    a(f"v_sub_u32 v{t2}, v{t1}, v{t2}")
    a(f"v_and_b32 v{t2}, 15, v{t2}")
    a(f"v_min_u32 v{t2}, 14, v{t2}")
    a(f"v_mul_u32_u24 v{t3}, 52, v{t2}")
    a(f"v_lshrrev_b32 v{t3}, 8, v{t3}")
    a(f"v_mul_u32_u24 v{t4}, 5, v{t3}")
    a(f"v_sub_u32 v{t4}, v{t2}, v{t4}")
    a(f"v_mul_u32_u24 v{vWd}, 3840, v{t0}")
    a(f"v_mul_u32_u24 v{t3}, 1280, v{t3}")
    a(f"v_add_u32 v{vWd}, v{vWd}, v{t3}")
    a(f"v_lshl_add_u32 v{vWd}, v{t4}, 4, v{vWd}")
    a(f"s_mul_i32 s{S_T0}, s{S_HP}, 80")
    a(f"v_add_u32 v{vWd}, s{S_T0}, v{vWd}")
    a(f"s_mul_i32 s{S_SW[0]}, s{S_WAVE}, {4 * 3840}")
    a(f"s_add_u32 s{S_SW[1]}, s{S_SW[0]}, {16 * 3840}")
    a(f"s_lshl_b32 s{S_WB}, s{S_WAVE}, 10")
    a(f"v_lshrrev_b32 v{t0}, 3, v0")
    a(f"v_and_b32 v{t1}, 7, v0")
    a(f"s_and_b32 s{S_T0}, s{S_WAVE}, 1")
    a(f"s_lshl_b32 s{S_T0}, s{S_T0}, 2")
    a(f"v_lshrrev_b32 v{t2}, 1, v{t0}")
    a(f"v_add_u32 v{t2}, s{S_T0}, v{t2}")
    a(f"v_xor_b32 v{t2}, v{t1}, v{t2}")
    a(f"v_mul_u32_u24 v{vXd}, 1280, v{t0}")
    a(f"v_lshl_add_u32 v{vXd}, v{t2}, 4, v{vXd}")
    a(f"s_lshl_b32 s{S_T0}, s{S_RB}, 7")
    a(f"s_lshl_b32 s{S_T1}, s{S_WAVE}, 3")
    a(f"s_add_i32 s{S_T0}, s{S_T0}, s{S_T1}")
    a(f"s_sub_i32 s{S_T0}, s{S_T0}, 16")
    for ii in range(5):
        a(f"s_add_i32 s{S_T1}, s{S_T0}, {32 * ii}")
        if ii == 0:
            a(f"s_max_i32 s{S_T1}, s{S_T1}, 0")
        a(f"s_mul_i32 s{S_SX[ii]}, s{S_T1}, 1280")
    a(f"s_lshl_b32 s{S_XB}, s{S_WAVE}, 10")
    a(f"s_add_u32 s{S_XB}, s{S_XB}, {X_RING}")
    a(f"s_cmp_lt_u32 s{S_WAVE}, 2")
    a(f"s_cselect_b32 s{S_SX[4]}, s{S_SX[4]}, 0x40000000")
    for sl in range(3):
        a(f"s_add_u32 s{S_T1}, s{S_XB}, {sl * X_SLOT + 16384}")
        a(f"s_cmp_lt_u32 s{S_WAVE}, 2")
        a(f"s_cselect_b32 s{S_X5[sl]}, s{S_T1}, {DUMMY}")

    def issue_w(slot, tag):
        for ii in range(2):
            a(f"s_add_u32 m0, s{S_WB}, {W_RING + slot * W_SLOT + ii * 4096}")
            c.vmem(f"buffer_load_dwordx4 v{vWd}, s[{SRD_W}:{SRD_W + 3}], s{S_SW[ii]} offen lds", tag)
        a(f"v_add_u32 v{vWd}, {32 * 3840}, v{vWd}")

    def issue_x_ops(slot, tag, inc):
        ops = []
        for ii in range(5):
            def op(ii=ii):
                if ii < 4:
                    a(f"s_add_u32 m0, s{S_XB}, {slot * X_SLOT + ii * 4096}")
                else:
                    a(f"s_mov_b32 m0, s{S_X5[slot]}")
                c.vmem(f"buffer_load_dwordx4 v{vXd}, s[{SRD_X}:{SRD_X + 3}], s{S_SX[ii]} offen lds", tag)
            ops.append(op)
        ops.append(lambda: a(f"v_add_u32 v{vXd}, {inc}, v{vXd}"))
        return ops

    for op in issue_x_ops(0, "x0", 128):
        op()
    issue_w(0, "w0")
    for op in issue_x_ops(1, "x1", 128):
        op()
    issue_w(1, "w1")
    issue_w(2, "w2")
    for op in issue_x_ops(2, "x2", 128):
        op()

    a(f"v_lshrrev_b32 v{t0}, 4, v0")
    a(f"v_bfe_u32 v{t1}, v0, 2, 2")
    a(f"v_and_b32 v{t2}, 3, v0")
    a(f"v_lshl_add_u32 v{t3}, v{t0}, 3, v{t1}")
    a(f"v_lshlrev_b32 v{t3}, 8, v{t3}")
    a(f"v_and_b32 v{t4}, 1, v{t0}")
    a(f"v_lshlrev_b32 v{t4}, 7, v{t4}")
    a(f"v_lshl_add_u32 v{t4}, v{t1}, 5, v{t4}")
    for f, name in enumerate(FT):
        if name in FT_BASE:
            a(f"v_lshl_add_u32 v{t5}, v{t2}, 3, v{t4}")
            a(f"v_add_u32 v{t5}, {FT_BASE[name]}, v{t5}")
        elif name == "QKx":
            a(f"v_mul_u32_u24 v{t5}, 40, v{t2}")
            a(f"v_add_u32 v{t5}, v{t5}, v{t4}")
            a(f"v_add_u32 v{t5}, 32, v{t5}")
        else:
            a(f"v_mul_u32_u24 v{t5}, 40, v{t2}")
            a(f"v_add_u32 v{t5}, 192, v{t5}")
            a(f"v_lshlrev_b32 v{vWr[f]}, 3, v{t2}")
            a(f"v_add_u32 v{vWr[f]}, 160, v{vWr[f]}")
            a(f"v_cmp_gt_u32 vcc, 2, v{t2}")
            a(f"v_cndmask_b32 v{t5}, v{vWr[f]}, v{t5}, vcc")
            a(f"v_add_u32 v{t5}, v{t5}, v{t4}")
        a(f"v_and_b32 v{t5}, 255, v{t5}")
        a(f"v_add_u32 v{vWr[f]}, v{t3}, v{t5}")
    a(f"v_mov_b32 v{vWh[0]}, v{vWr[2]}")
    a(f"v_mov_b32 v{vWh[1]}, v{vWr[5]}")
    for wv, (fk, fv) in ((1, (3, 6)), (2, (4, 7))):
        a(f"s_cmp_eq_u32 s{S_WAVE}, {wv}")
        a("s_cselect_b64 vcc, -1, 0")
        a(f"v_cndmask_b32 v{vWh[0]}, v{vWh[0]}, v{vWr[fk]}, vcc")
        a(f"v_cndmask_b32 v{vWh[1]}, v{vWh[1]}, v{vWr[fv]}, vcc")
    a(f"v_and_b32 v{t1}, 15, v0")
    a(f"v_bfe_u32 v{t2}, v0, 1, 3")
    a(f"v_xor_b32 v{t2}, v{t0}, v{t2}")
    a(f"v_lshlrev_b32 v{t1}, 7, v{t1}")
    a(f"v_lshl_add_u32 v{vXh[0]}, v{t2}, 4, v{t1}")
    a(f"v_xor_b32 v{vXh[1]}, 64, v{vXh[0]}")
    a(f"v_add_u32 v{vXh[0]}, {X_RING}, v{vXh[0]}")
    a(f"v_add_u32 v{vXh[1]}, {X_RING}, v{vXh[1]}")
    a(f"s_lshl_b32 s{S_T0}, s{S_WAVE}, 12")
    a(f"s_add_u32 s{S_T0}, s{S_T0}, 2048")
    a(f"v_add_u32 v{vXr[0]}, s{S_T0}, v{vXh[0]}")
    a(f"v_add_u32 v{vXr[1]}, s{S_T0}, v{vXh[1]}")
    for T in range(2):
        for f in range(8):
            for i in range(4):
                a(f"v_mov_b32 v{ACC[T][f] + i}, 0")
    for h in range(2):
        for i in range(4):
            a(f"v_mov_b32 v{HAC[h] + i}, 0")

    def frag_reads(s):
        p = s & 1
        wo = W_RING + (s % 3) * W_SLOT
        xo = ((s >> 1) % 3) * X_SLOT
        sg = s & 1
        ops = []
        ops.append(lambda: c.ds(f"ds_read_b128 {vr(XF[p][0], 4)}, v{vXr[sg]} offset:{xo}"))
        ops.append(lambda: c.ds(f"ds_read_b128 {vr(XF[p][1], 4)}, v{vXr[sg]} offset:{xo + 2048}"))
        for f in range(8):
            for h in range(2):
                ops.append(lambda f=f, h=h: c.ds(f"ds_read_b64_tr_b16 {vr(WF[p][f] + 2 * h, 2)}, v{vWr[f]} offset:{wo + 1024 * h}"))
        ops.append(lambda: c.ds(f"ds_read_b128 {vr(XF[p][2], 4)}, v{vXh[sg]} offset:{xo}"))
        for f in range(2):
            for h in range(2):
                ops.append(lambda f=f, h=h: c.ds(f"ds_read_b64_tr_b16 {vr(WH[p][f] + 2 * h, 2)}, v{vWh[f]} offset:{wo + 1024 * h}"))
        return ops

    def mfmas(s):
        p = s & 1
        ops = []
        for f, name in enumerate(FT):
            for T in range(2):
                if name in KTYPE:
                    A, B = WF[p][f], XF[p][T]
                else:
                    A, B = XF[p][T], WF[p][f]
                ops.append(lambda f=f, T=T, A=A, B=B: a(f"v_mfma_f32_16x16x32_bf16 {vr(ACC[T][f], 4)}, {vr(A, 4)}, {vr(B, 4)}, {vr(ACC[T][f], 4)}"))
        ops.append(lambda: a(f"v_mfma_f32_16x16x32_bf16 {vr(HAC[0], 4)}, {vr(WH[p][0], 4)}, {vr(XF[p][2], 4)}, {vr(HAC[0], 4)}"))
        ops.append(lambda: a(f"v_mfma_f32_16x16x32_bf16 {vr(HAC[1], 4)}, {vr(XF[p][2], 4)}, {vr(WH[p][1], 4)}, {vr(HAC[1], 4)}"))
        return ops

    def step(u, dma=True, reads=True, top=True):
        if top:
            a("s_waitcnt vmcnt(7) lgkmcnt(0)")
            a("s_barrier")
        else:
            a("s_waitcnt lgkmcnt(0)")
        mf = mfmas(u)
        others = []
        if dma:
            def wop():
                issue_w(u % 3, "w")
            others.append(wop)
        rd = frag_reads(u + 1) if reads else []
        xo = []
        if dma and (u & 1):
            xo = issue_x_ops(((u - 1) // 2) % 3, "x", "s%d" % S_XINC)
        rd = list(rd)
        extra = others + xo
        pool = []
        while rd or extra:
            for _ in range(3):
                if rd:
                    pool.append(rd.pop(0))
            if extra:
                pool.append(extra.pop(0))
        n = len(mf)
        per = [len(pool) // n + (1 if i < len(pool) % n else 0) for i in range(n)]
        for i, m in enumerate(mf):
            m()
            for _ in range(per[i]):
                pool.pop(0)()

    a("s_waitcnt vmcnt(14)")
    a("s_barrier")
    for op in frag_reads(0):
        op()
    a(f"s_mov_b32 s{S_IT}, 0")
    a(f"s_movk_i32 s{S_XINC}, 128")
    loop = a.newlabel("a1loop")
    a.label(loop)
    for u in range(6):
        if u == 1:
            a(f"s_cmp_eq_u32 s{S_IT}, 2")
            a(f"s_cselect_b32 s{S_XINC}, 0x40000000, 128")
        if u == 3:
            a(f"s_movk_i32 s{S_XINC}, 128")
        step(u)
    a(f"s_add_u32 s{S_IT}, s{S_IT}, 1")
    a(f"s_cmp_lt_u32 s{S_IT}, 3")
    a(f"s_cbranch_scc1 {loop}")
    step(0, dma=False, reads=True)
    step(1, dma=False, reads=False, top=False)

    a("s_waitcnt vmcnt(0)")
    a("s_barrier")
    if mid_hook:
        mid_hook(a, c)
    e = Alloc(fr0, 256)
    QT = [[e.get(f"qt{T}{h}", 4, 2) for h in range(2)] for T in range(2)]
    KT = [[e.get(f"kt{P}{h}", 4, 2) for h in range(2)] for P in range(3)]
    VS = [e.get(f"vs{h}", 6, 2) for h in range(2)]
    VX = e.get("vx", 6, 2)
    XP = [e.get(f"xp{P}", 2, 2) for P in range(3)]
    HP = [e.get(f"hp{i}", 2, 2) for i in range(2)]
    BC = e.get("bc", 4, 2)
    BP = e.get("bp", 4, 2)
    BPA = e.get("bpa", 4, 2)
    ONES = e.get("ones", 4, 2)
    vEw, vEh, vEr = e.get("ew"), e.get("eh"), e.get("er")
    vSt, vSx = e.get("st"), e.get("sx")
    OM = [e.get(f"om{T}", 4, 2) for T in range(2)]
    OXP = [e.get(f"oxp{T}", 2, 2) for T in range(2)]
    PT = [e.get(f"pt{h}", 4, 2) for h in range(2)]

    def pack(dst, src):
        a(f"v_cvt_pk_bf16_f32 v{dst}, v{src}, v{src + 1}")
        a(f"v_cvt_pk_bf16_f32 v{dst + 1}, v{src + 2}, v{src + 3}")

    EX = 0
    a(f"s_mul_i32 s{S_T0}, s{S_WAVE}, 3072")
    a(f"v_lshl_add_u32 v{vEr}, v0, 3, s{S_T0}")
    a(f"v_add_u32 v{vEw}, 3072, v{vEr}")
    a(f"s_lshl_b32 s{S_T1}, s{S_WAVE}, 9")
    a(f"s_cmp_lt_u32 s{S_WAVE}, 3")
    a(f"s_cselect_b32 s{S_T1}, s{S_T1}, {5 * 3072}")
    a(f"v_lshl_add_u32 v{vEh}, v0, 3, s{S_T1}")
    for h in range(2):
        pack(KT[2][h], ACC[1][2 + h])
        pack(VS[h] + 4, ACC[1][5 + h])
    pack(XP[2], ACC[1][4])
    pack(VX + 4, ACC[1][7])
    pack(HP[0], HAC[0])
    pack(HP[1], HAC[1])
    c.ds(f"ds_write_b64 v{vEw}, {vr(KT[2][0], 2)} offset:{EX + 0}")
    c.ds(f"ds_write_b64 v{vEw}, {vr(KT[2][1], 2)} offset:{EX + 512}")
    c.ds(f"ds_write_b64 v{vEw}, {vr(XP[2], 2)} offset:{EX + 1024}")
    c.ds(f"ds_write_b64 v{vEw}, {vr(VS[0] + 4, 2)} offset:{EX + 1536}")
    c.ds(f"ds_write_b64 v{vEw}, {vr(VS[1] + 4, 2)} offset:{EX + 2048}")
    c.ds(f"ds_write_b64 v{vEw}, {vr(VX + 4, 2)} offset:{EX + 2560}")
    c.ds(f"ds_write_b64 v{vEh}, {vr(HP[0], 2)} offset:{EX + 0}")
    c.ds(f"ds_write_b64 v{vEh}, {vr(HP[1], 2)} offset:{EX + 1536}")
    for h in range(2):
        pack(KT[1][h], ACC[0][2 + h])
        pack(VS[h] + 2, ACC[0][5 + h])
        for T in range(2):
            pack(QT[T][h], ACC[T][h])
    pack(XP[1], ACC[0][4])
    pack(VX + 2, ACC[0][7])
    a(f"v_and_b32 v{t0}, 15, v0")
    a(f"v_lshrrev_b32 v{t1}, 4, v0")
    a(f"v_lshlrev_b32 v{t1}, 2, v{t1}")
    a(f"v_sub_u32 v{t0}, v{t0}, v{t1}")
    a(f"v_mov_b32 v{t2}, {hex(f2u(NEG))}")
    for r in range(4):
        for (dst, add) in ((BC + r, -r), (BP + r, 16 - r)):
            a(f"v_add_u32 v{t1}, {add}, v{t0}")
            a(f"v_and_b32 v{t3}, 0xfffffff1, v{t1}")
            a(f"v_cmp_eq_u32 vcc, 0, v{t3}")
            a(f"v_cndmask_b32_e64 v{dst}, v{t2}, 0, vcc")
    a(f"s_or_b32 s{S_T0}, s{S_RB}, s{S_WAVE}")
    a(f"s_cmp_eq_u32 s{S_T0}, 0")
    a("s_cselect_b64 vcc, -1, 0")
    for r in range(4):
        a(f"v_cndmask_b32 v{BPA + r}, v{BP + r}, v{t2}, vcc")
        a(f"v_mov_b32 v{ONES + r}, 0x3f803f80")
    a(f"s_mov_b32 s{S_C}, {hex(f2u(20 ** -0.5 * 1.4426950408889634))}")
    a(f"s_mov_b32 s{S_M0}, 0xffff")
    a(f"s_mov_b32 s{S_M0 + 1}, 0")
    a(f"s_mov_b32 s{S_M1}, 0xffff0000")
    a(f"s_mov_b32 s{S_M1 + 1}, 0")
    c.wait_lg0()
    a("s_barrier")
    c.ds(f"ds_read_b64 {vr(KT[0][0], 2)}, v{vEr} offset:{EX + 0}")
    c.ds(f"ds_read_b64 {vr(KT[0][1], 2)}, v{vEr} offset:{EX + 512}")
    c.ds(f"ds_read_b64 {vr(XP[0], 2)}, v{vEr} offset:{EX + 1024}")
    c.ds(f"ds_read_b64 {vr(VS[0], 2)}, v{vEr} offset:{EX + 1536}")
    c.ds(f"ds_read_b64 {vr(VS[1], 2)}, v{vEr} offset:{EX + 2048}")
    c.ds(f"ds_read_b64 {vr(VX, 2)}, v{vEr} offset:{EX + 2560}")

    def xsplit(P, T):
        for i in range(2):
            a(f"v_mov_b32 v{KT[P][0] + 2 + i}, v{XP[P] + i}")
        for i in range(2):
            a(f"v_permlane32_swap_b32 v{XP[P] + i}, v{KT[P][0] + 2 + i}")
        for i in range(2):
            a(f"v_mov_b32 v{KT[P][1] + 2 + i}, v{KT[P][0] + 2 + i}")
        if T is not None:
            for i in range(2):
                a(f"v_cndmask_b32_e64 v{QT[T][0] + 2 + i}, 0, v{XP[P] + i}, s[{S_M0}:{S_M0 + 1}]")
                a(f"v_cndmask_b32_e64 v{QT[T][1] + 2 + i}, 0, v{XP[P] + i}, s[{S_M1}:{S_M1 + 1}]")

    xsplit(1, 0)
    xsplit(2, 1)
    c.wait_lg0()
    xsplit(0, None)

    free4 = [ACC[T][f] for T in range(2) for f in range(8)]

    def unit(T, h):
        base = 8 * h
        Sp, Sc, O, Ox, Sm = free4[base + 0], free4[base + 1], free4[base + 2], free4[base + 3], free4[base + 4]
        m1, m2 = free4[base + 5], free4[base + 5] + 1
        mt = free4[base + 5] + 2
        inv = free4[base + 5] + 3
        L = []
        Pk, Ck = (0, 1) if T == 0 else (1, 2)
        bp = BPA if T == 0 else BP
        L.append(f"v_mfma_f32_16x16x32_bf16 {vr(Sp, 4)}, {vr(KT[Pk][h], 4)}, {vr(QT[T][h], 4)}, {vr(bp, 4)}")
        L.append(f"v_mfma_f32_16x16x32_bf16 {vr(Sc, 4)}, {vr(KT[Ck][h], 4)}, {vr(QT[T][h], 4)}, {vr(BC, 4)}")
        L.append(f"v_max3_f32 v{m1}, v{Sp}, v{Sp + 1}, v{Sp + 2}")
        L.append(f"v_max3_f32 v{m2}, v{Sc}, v{Sc + 1}, v{Sc + 2}")
        L.append(f"v_max3_f32 v{m1}, v{m1}, v{Sp + 3}, v{Sc + 3}")
        L.append(f"v_max_f32 v{m1}, v{m1}, v{m2}")
        L.append(f"v_mov_b32 v{mt}, v{m1}")
        L.append(f"v_permlane32_swap_b32 v{m1}, v{mt}")
        L.append(f"v_max_f32 v{m1}, v{m1}, v{mt}")
        L.append(f"v_mov_b32 v{mt}, v{m1}")
        L.append(f"v_permlane16_swap_b32 v{m1}, v{mt}")
        L.append(f"v_max_f32 v{m1}, v{m1}, v{mt}")
        L.append(f"v_mul_f32 v{m1}, s{S_C}, v{m1}")
        for i in range(4):
            L.append(f"v_fma_f32 v{Sp + i}, v{Sp + i}, s{S_C}, -v{m1}")
            L.append(f"v_fma_f32 v{Sc + i}, v{Sc + i}, s{S_C}, -v{m1}")
        for i in range(4):
            L.append(f"v_exp_f32 v{Sp + i}, v{Sp + i}")
            L.append(f"v_exp_f32 v{Sc + i}, v{Sc + i}")
        pt = PT[h]
        L.append(f"v_cvt_pk_bf16_f32 v{pt}, v{Sp}, v{Sp + 1}")
        L.append(f"v_cvt_pk_bf16_f32 v{pt + 1}, v{Sp + 2}, v{Sp + 3}")
        L.append(f"v_cvt_pk_bf16_f32 v{pt + 2}, v{Sc}, v{Sc + 1}")
        L.append(f"v_cvt_pk_bf16_f32 v{pt + 3}, v{Sc + 2}, v{Sc + 3}")
        vo = 2 * T
        L.append(f"v_mfma_f32_16x16x32_bf16 {vr(Sm, 4)}, {vr(ONES, 4)}, {vr(pt, 4)}, 0")
        L.append(f"v_mfma_f32_16x16x32_bf16 {vr(O, 4)}, {vr(VS[h] + vo, 4)}, {vr(pt, 4)}, 0")
        L.append(f"v_mfma_f32_16x16x32_bf16 {vr(Ox, 4)}, {vr(VX + vo, 4)}, {vr(pt, 4)}, 0")
        L.append(f"v_rcp_f32 v{inv}, v{Sm}")
        for i in range(4):
            L.append(f"v_mul_f32 v{O + i}, v{O + i}, v{inv}")
        L.append(f"v_cvt_pk_bf16_f32 v{OM[T] + 2 * h}, v{O}, v{O + 1}")
        L.append(f"v_cvt_pk_bf16_f32 v{OM[T] + 2 * h + 1}, v{O + 2}, v{O + 3}")
        return L, Ox, inv

    a(f"s_lshl_b32 s{S_T0}, s{S_RB}, 3")
    a(f"s_lshl_b32 s{S_T1}, s{S_WAVE}, 1")
    a(f"s_add_u32 s{S_T0}, s{S_T0}, s{S_T1}")
    a(f"s_mul_i32 s{S_T0}, s{S_T0}, 20480")
    a(f"s_lshl_b32 s{S_T1}, s{S_HP}, 10")
    a(f"s_add_u32 s{S_T1}, s{S_T1}, s{S_T0}")
    a(f"v_lshl_add_u32 v{vSt}, v0, 4, s{S_T1}")
    a(f"s_lshr_b32 s{S_T1}, s{S_HP}, 2")
    a(f"s_add_u32 s{S_T1}, s{S_T1}, 16")
    a(f"s_lshl_b32 s{S_T1}, s{S_T1}, 10")
    a(f"s_add_u32 s{S_T1}, s{S_T1}, s{S_T0}")
    a(f"s_and_b32 s{S_T2}, s{S_HP}, 3")
    a(f"s_lshl_b32 s{S_T2}, s{S_T2}, 8")
    a(f"s_add_u32 s{S_T1}, s{S_T1}, s{S_T2}")
    a(f"v_and_b32 v{t0}, 15, v0")
    a(f"v_lshlrev_b32 v{t0}, 4, v{t0}")
    a(f"v_bfe_u32 v{t1}, v0, 4, 1")
    a(f"v_lshl_add_u32 v{t0}, v{t1}, 3, v{t0}")
    a(f"v_add_u32 v{vSx}, s{S_T1}, v{t0}")

    for T in range(2):
        L0, ox0, inv0 = unit(T, 0)
        L1, ox1, inv1 = unit(T, 1)
        for x, y in zip(L0, L1):
            a(x)
            a(y)
        for i in range(4):
            a(f"v_cndmask_b32_e64 v{ox1 + i}, v{ox1 + i}, v{ox0 + i}, s[{S_M0}:{S_M0 + 1}]")
        a(f"v_cndmask_b32_e64 v{inv1}, v{inv1}, v{inv0}, s[{S_M0}:{S_M0 + 1}]")
        for i in range(4):
            a(f"v_mul_f32 v{ox1 + i}, v{ox1 + i}, v{inv1}")
        a(f"v_cvt_pk_bf16_f32 v{OXP[T]}, v{ox1}, v{ox1 + 1}")
        a(f"v_cvt_pk_bf16_f32 v{OXP[T] + 1}, v{ox1 + 2}, v{ox1 + 3}")
        a(f"s_mov_b32 s{S_T0}, {T * 20480}")
        c.vmem(f"buffer_store_dwordx4 {vr(OM[T], 4)}, v{vSt}, s[{SRD_O}:{SRD_O + 3}], s{S_T0} offen {sc1_st}", "ost")
        a("s_mov_b32 exec_hi, 0")
        c.vmem(f"buffer_store_dwordx2 {vr(OXP[T], 2)}, v{vSx}, s[{SRD_O}:{SRD_O + 3}], s{S_T0} offen {sc1_st}", "ost")
        a("s_mov_b32 exec_hi, -1")
    return c


def gen_a2_wo_dma(a, c, vM, vX, tmp, ksteps, lds_of):
    for ks in ksteps:
        if ks < 16:
            a(f"s_add_u32 s{S_T0}, s{S_T2}, {40 * ks * 1280}")
            v = vM
        else:
            a(f"s_add_u32 s{S_T0}, s{S_T3}, {160 * (ks - 16) * 1280}")
            v = vX
        a(f"s_add_u32 m0, s{S_T1}, {lds_of(ks)}")
        c.vmem(f"buffer_load_dwordx4 v{v}, s[{SRD_W}:{SRD_W + 3}], s{S_T0} offen lds", f"wo{ks}")


def a2_wo_setup(a, vM, vX, t0, t1, t2):
    make_srd(a, SRD_W, S_WO, D * D * 2)
    a(f"v_lshrrev_b32 v{t0}, 3, v0")
    a(f"v_and_b32 v{t1}, 7, v0")
    a(f"v_bfe_u32 v{t2}, v0, 4, 2")
    a(f"v_lshlrev_b32 v{t2}, 1, v{t2}")
    a(f"v_sub_u32 v{t1}, v{t1}, v{t2}")
    a(f"v_and_b32 v{t1}, 7, v{t1}")
    a(f"s_lshl_b32 s{S_T0}, s{S_HP}, 7")
    a(f"v_lshl_add_u32 v{t1}, v{t1}, 4, s{S_T0}")
    a(f"v_mul_u32_u24 v{vM}, 1280, v{t0}")
    a(f"v_add_u32 v{vM}, v{vM}, v{t1}")
    a(f"v_lshrrev_b32 v{t2}, 2, v{t0}")
    a(f"v_mul_u32_u24 v{t2}, 40, v{t2}")
    a(f"v_and_b32 v{t0}, 3, v{t0}")
    a(f"v_add_u32 v{t2}, v{t2}, v{t0}")
    a(f"v_mul_u32_u24 v{vX}, 1280, v{t2}")
    a(f"v_add_u32 v{vX}, v{vX}, v{t1}")
    a(f"s_lshr_b32 s{S_T0}, s{S_WAVE}, 1")
    a(f"s_mul_i32 s{S_T0}, s{S_T0}, 20")
    a(f"s_and_b32 s{S_T1}, s{S_WAVE}, 1")
    a(f"s_lshl_b32 s{S_T2}, s{S_T1}, 3")
    a(f"s_add_u32 s{S_T2}, s{S_T2}, s{S_T0}")
    a(f"s_mul_i32 s{S_T2}, s{S_T2}, 1280")
    a(f"s_mul_i32 s{S_T3}, s{S_T1}, 80")
    a(f"s_add_u32 s{S_T3}, s{S_T3}, s{S_T0}")
    a(f"s_add_u32 s{S_T3}, s{S_T3}, 16")
    a(f"s_mul_i32 s{S_T3}, s{S_T3}, 1280")
    a(f"s_lshl_b32 s{S_T1}, s{S_WAVE}, 10")


def gen_a2_main(a, c, al, sc1_ld="", lds_of=lambda ks: ks * 4096, wait_wo=True):
    t0, t1, t2, t3 = (al.get(f"u{i}") for i in range(4))
    vO = al.get("vo")
    vA = [al.get(f"va{i}") for i in range(4)]
    OF = [[al.get(f"of{T}_{k}", 4, 2) for k in range(20)] for T in range(2)]
    ACC = [[al.get(f"a2acc{T}_{ct}", 4, 2) for ct in range(4)] for T in range(2)]
    WFR = [[al.get(f"a2w{p}_{ct}", 4, 2) for ct in range(4)] for p in range(2)]
    make_srd(a, SRD_OUT, S_OUT, 2 * SZ)
    a(f"s_lshl_b32 s{S_T0}, s{S_RB}, 3")
    a(f"s_lshl_b32 s{S_T2}, s{S_WAVE}, 1")
    a(f"s_add_u32 s{S_T0}, s{S_T0}, s{S_T2}")
    a(f"s_mul_i32 s{S_T0}, s{S_T0}, 20480")
    a(f"v_lshl_add_u32 v{vO}, v0, 4, s{S_T0}")
    for k in range(20):
        for T in range(2):
            a(f"s_mov_b32 s{S_T0}, {T * 20480 + k * 1024}")
            c.vmem(f"buffer_load_dwordx4 {vr(OF[T][k], 4)}, v{vO}, s[{SRD_O}:{SRD_O + 3}], s{S_T0} offen {sc1_ld}", f"o{k}")
    a(f"v_lshrrev_b32 v{t0}, 4, v0")
    a(f"v_bfe_u32 v{t1}, v0, 2, 2")
    a(f"v_and_b32 v{t2}, 3, v0")
    a(f"v_lshl_add_u32 v{t3}, v{t0}, 2, v{t1}")
    a(f"v_lshlrev_b32 v{t3}, 7, v{t3}")
    a(f"v_and_b32 v{t0}, 1, v{t0}")
    a(f"v_lshlrev_b32 v{t0}, 1, v{t0}")
    a(f"v_lshrrev_b32 v{t1}, 1, v{t1}")
    a(f"v_add_u32 v{t0}, v{t0}, v{t1}")
    a(f"v_lshlrev_b32 v{t0}, 5, v{t0}")
    a(f"v_lshl_add_u32 v{t0}, v{t2}, 3, v{t0}")
    for ct in range(4):
        a(f"v_add_u32 v{t1}, {32 * ct}, v{t0}")
        a(f"v_and_b32 v{t1}, 127, v{t1}")
        a(f"v_add_u32 v{vA[ct]}, v{t3}, v{t1}")
    for T in range(2):
        for ct in range(4):
            for i in range(4):
                a(f"v_mov_b32 v{ACC[T][ct] + i}, 0")
    if wait_wo:
        c.wait_vm([f"wo{k}" for k in range(20)])
        a("s_barrier")
    shifted = [0]

    def reads(k):
        p = k & 1
        off = lds_of(k)
        if off - shifted[0] + 2048 > 65535 - 0:
            for ct in range(4):
                a(f"v_add_u32 v{vA[ct]}, 40960, v{vA[ct]}")
            shifted[0] += 40960
        ops = []
        for ct in range(4):
            for h in range(2):
                ops.append(f"ds_read_b64_tr_b16 {vr(WFR[p][ct] + 2 * h, 2)}, v{vA[ct]} offset:{off - shifted[0] + 2048 * h}")
        return ops

    for s in reads(0):
        c.ds(s)
    for k in range(20):
        p = k & 1
        rd = reads(k + 1) if k < 19 else []
        c.wait_vm(f"o{k}")
        a(f"s_waitcnt lgkmcnt(0)")
        i = 0
        for ct in range(4):
            for T in range(2):
                a(f"v_mfma_f32_16x16x32_bf16 {vr(ACC[T][ct], 4)}, {vr(WFR[p][ct], 4)}, {vr(OF[T][k], 4)}, {vr(ACC[T][ct], 4)}")
                if rd:
                    c.ds(rd.pop(0))
    a("s_barrier")
    a(f"v_and_b32 v{t0}, 15, v0")
    a(f"v_lshrrev_b32 v{t1}, 5, v0")
    a(f"v_bfe_u32 v{t2}, v0, 4, 1")
    a(f"v_and_b32 v{t3}, 7, v0")
    a(f"s_lshl_b32 s{S_T0}, s{S_WAVE}, 12")
    a(f"v_lshl_add_u32 v{t0}, v{t0}, 7, s{S_T0}")
    a(f"v_lshl_add_u32 v{t0}, v{t2}, 3, v{t0}")
    PKS = [OF[0][0], OF[0][1], OF[0][2], OF[0][3]]
    for ct in range(4):
        a(f"v_add_u32 v{t2}, {2 * ct}, v{t1}")
        a(f"v_xor_b32 v{t2}, v{t2}, v{t3}")
        a(f"v_lshl_add_u32 v{vA[ct]}, v{t2}, 4, v{t0}")
    for T in range(2):
        for ct in range(4):
            pk = PKS[ct] + 2 * T
            a(f"v_cvt_pk_bf16_f32 v{pk}, v{ACC[T][ct]}, v{ACC[T][ct] + 1}")
            a(f"v_cvt_pk_bf16_f32 v{pk + 1}, v{ACC[T][ct] + 2}, v{ACC[T][ct] + 3}")
            c.ds(f"ds_write_b64 v{vA[ct]}, {vr(pk, 2)} offset:{T * 2048}")
    a(f"v_lshrrev_b32 v{t0}, 3, v0")
    a(f"v_and_b32 v{t1}, 7, v0")
    a(f"v_xor_b32 v{t2}, v{t1}, v{t0}")
    a(f"v_lshlrev_b32 v{t2}, 4, v{t2}")
    a(f"v_lshl_add_u32 v{t2}, v{t0}, 7, v{t2}")
    a(f"v_add_u32 v{t2}, s{S_T0}, v{t2}")
    a(f"s_lshl_b32 s{S_T1}, s{S_RB}, 7")
    a(f"s_lshl_b32 s{S_T2}, s{S_WAVE}, 5")
    a(f"s_add_u32 s{S_T1}, s{S_T1}, s{S_T2}")
    a(f"s_mul_i32 s{S_T1}, s{S_T1}, 2560")
    a(f"s_lshl_b32 s{S_T2}, s{S_HP}, 7")
    a(f"s_add_u32 s{S_T1}, s{S_T1}, s{S_T2}")
    a(f"v_mul_u32_u24 v{t0}, 2560, v{t0}")
    a(f"v_lshl_add_u32 v{t0}, v{t1}, 4, v{t0}")
    a(f"v_add_u32 v{t0}, s{S_T1}, v{t0}")
    c.wait_lg0()
    RB_ = [OF[1][0], OF[1][1], OF[1][2], OF[1][3]]
    for i in range(4):
        c.ds(f"ds_read_b128 {vr(RB_[i], 4)}, v{t2} offset:{i * 1024}", f"rb{i}")
    for i in range(4):
        c.wait_lg(f"rb{i}")
        a(f"s_mov_b32 s{S_T1}, {i * 8 * 2560}")
        c.vmem(f"buffer_store_dwordx4 {vr(RB_[i], 4)}, v{t0}, s[{SRD_OUT}:{SRD_OUT + 3}], s{S_T1} offen")


def gen_a1_full(a):
    a_ids(a)
    gen_a1(a)


def gen_a2_full(a):
    a_ids(a)
    end = a.newlabel("a2end")
    a(f"s_cmp_ge_u32 s{S_HP}, 10")
    a(f"s_cbranch_scc1 {end}")
    c = Ctx(a)
    al = Alloc(1, 256)
    vM, vX, t0, t1, t2 = (al.get(n) for n in ("m", "x", "t0", "t1", "t2"))
    make_srd(a, SRD_O, S_WS, SZ, add=OFF_O)
    a2_wo_setup(a, vM, vX, t0, t1, t2)
    gen_a2_wo_dma(a, c, vM, vX, t0, range(20), lambda ks: ks * 4096)
    gen_a2_main(a, c, al)
    a.label(end)
```

```python
import re


class Reg:
    pass


def vr(n, cnt=1):
    return f"v{n}" if cnt == 1 else f"v[{n}:{n + cnt - 1}]"


def sr(n, cnt=1):
    return f"s{n}" if cnt == 1 else f"s[{n}:{n + cnt - 1}]"


_REG_RE = re.compile(r"^(-|abs\()?\s*([vsa])(\d+)\)?$")
_RNG_RE = re.compile(r"^(-|abs\()?\s*([vsa])\[(\d+):(\d+)\]\)?$")


def parse_reg(tok):
    tok = tok.strip()
    if tok.startswith("-"):
        tok = tok[1:]
    if tok.startswith("abs(") and tok.endswith(")"):
        tok = tok[4:-1]
    if tok.startswith("|") and tok.endswith("|"):
        tok = tok[1:-1]
    m = re.match(r"^([vsa])(\d+)$", tok)
    if m:
        return {(m.group(1), int(m.group(2)))}
    m = re.match(r"^([vsa])\[(\d+):(\d+)\]$", tok)
    if m:
        return {(m.group(1), i) for i in range(int(m.group(2)), int(m.group(3)) + 1)}
    if tok == "vcc":
        return {("s", "vcc_lo"), ("s", "vcc_hi")}
    if tok in ("vcc_lo", "vcc_hi"):
        return {("s", tok)}
    if tok == "exec":
        return {("s", "exec_lo"), ("s", "exec_hi")}
    if tok in ("exec_lo", "exec_hi"):
        return {("s", tok)}
    if tok == "m0":
        return {("s", "m0")}
    return set()


def split_ops(s):
    ops, depth, cur = [], 0, ""
    for ch in s:
        if ch in "[(":
            depth += 1
        if ch in "])":
            depth -= 1
        if ch == "," and depth == 0:
            ops.append(cur.strip())
            cur = ""
        else:
            cur += ch
    if cur.strip():
        ops.append(cur.strip())
    return ops


TRANS = ("v_exp", "v_log", "v_rcp", "v_rsq", "v_sqrt", "v_sin", "v_cos")
DPP_MODS = ("wave_ror", "wave_shr", "wave_rol", "wave_shl", "row_shr", "row_shl", "row_ror", "quad_perm",
            "row_bcast", "row_mirror", "row_half_mirror", "row_newbcast")


class Instr:
    def __init__(self, text):
        self.text = text
        t = text.split(";")[0].strip()
        parts = t.split(None, 1)
        self.mn = parts[0]
        rest = parts[1] if len(parts) > 1 else ""
        ops = split_ops(rest)
        mods = ""
        if ops:
            last = ops[-1].split(None, 1)
            if len(last) > 1 and not ops[-1].startswith("hwreg") and not self.mn.startswith("s_waitcnt"):
                ops[-1] = last[0]
                mods = last[1]
        self.ops = ops
        self.mods = mods
        self.kind = None
        self.defs = set()
        self.uses = set()
        self.passes = 0
        self.srcC = set()
        self.srcAB = set()
        self.is_trans = False
        self.is_dpp = False
        self.is_perm = False
        self.is_readlane = False
        self.is_wide_store = False
        self.store_data = set()
        self.is_lds_dma = False
        self.ws = 1
        self.classify()

    def regs(self, idxs):
        r = set()
        for i in idxs:
            if i < len(self.ops):
                r |= parse_reg(self.ops[i])
        return r

    def classify(self):
        mn, n = self.mn, len(self.ops)
        allr = list(range(n))
        if mn.startswith("v_mfma"):
            self.kind = "MFMA"
            self.passes = 8 if "32x32" in mn else 4
            self.defs = self.regs([0])
            self.srcAB = self.regs([1, 2])
            self.srcC = self.regs([3])
            self.uses = self.srcAB | self.srcC
        elif mn.startswith("v_"):
            self.kind = "VALU"
            self.is_trans = mn.startswith(TRANS)
            self.is_dpp = any(m in self.mods for m in DPP_MODS) or mn.endswith("_dpp")
            if mn.startswith("v_permlane"):
                self.is_perm = True
                self.defs = self.regs([0, 1])
                self.uses = self.regs([0, 1])
            elif mn.startswith("v_readfirstlane") or mn.startswith("v_readlane"):
                self.is_readlane = True
                self.defs = self.regs([0])
                self.uses = self.regs(allr[1:])
            elif mn.startswith("v_cmp"):
                self.defs = self.regs([0])
                self.uses = self.regs(allr[1:])
            elif mn.startswith("v_nop"):
                pass
            else:
                self.defs = self.regs([0])
                self.uses = self.regs(allr[1:])
                if mn.startswith(("v_fmac", "v_pk_fmac", "v_dot2c")) or (self.is_dpp and "bound_ctrl" not in self.mods):
                    self.uses |= self.defs
                if mn.startswith(("v_add_co", "v_sub_co", "v_addc_co", "v_subb_co")):
                    self.defs |= self.regs([1])
        elif mn.startswith("ds_"):
            self.kind = "DS"
            if mn.startswith("ds_read") or mn.startswith("ds_bpermute") or mn.startswith("ds_swizzle") or mn.startswith("ds_permute"):
                self.defs = self.regs([0])
                self.uses = self.regs(allr[1:])
            else:
                self.uses = self.regs(allr)
        elif mn.startswith("buffer_") or mn.startswith("global_"):
            self.kind = "VMEM"
            is_lds = re.search(r"\blds\b", self.mods) is not None
            if mn.startswith("buffer_load"):
                if is_lds:
                    self.is_lds_dma = True
                    self.uses = self.regs(allr) | {("s", "m0")}
                else:
                    self.defs = self.regs([0])
                    self.uses = self.regs(allr[1:])
            elif mn.startswith("buffer_store"):
                self.uses = self.regs(allr)
                self.store_data = self.regs([0])
                self.is_wide_store = mn.endswith(("x3", "x4"))
            elif mn.startswith("global_load"):
                self.defs = self.regs([0])
                self.uses = self.regs(allr[1:])
            elif mn.startswith("global_store"):
                self.uses = self.regs(allr)
                self.store_data = self.regs([1])
                self.is_wide_store = mn.endswith(("x3", "x4"))
            elif "atomic" in mn:
                self.uses = self.regs(allr)
                if "sc0" in self.mods:
                    self.defs = self.regs([0])
            else:
                self.uses = self.regs(allr)
        elif mn.startswith("s_"):
            self.kind = "SALU"
            if mn == "s_nop":
                self.ws = int(self.ops[0], 0) + 1
                self.kind = "NOP"
            elif mn.startswith(("s_load", "s_buffer_load", "s_memtime", "s_memrealtime")):
                self.kind = "SMEM"
                self.defs = self.regs([0])
                self.uses = self.regs(allr[1:])
            elif mn.startswith(("s_cmp", "s_waitcnt", "s_barrier", "s_cbranch", "s_branch", "s_endpgm", "s_setprio",
                                "s_sleep", "s_bitcmp")):
                self.uses = self.regs(allr)
            elif mn.startswith("s_getpc"):
                self.defs = self.regs([0])
            else:
                self.defs = self.regs([0])
                self.uses = self.regs(allr[1:])
                if "saveexec" in mn:
                    self.defs |= parse_reg("exec")
                    self.uses |= parse_reg("exec")
        else:
            raise ValueError("unknown instr: " + self.text)

    @property
    def vdefs(self):
        return {r for r in self.defs if r[0] in "va"}

    @property
    def sdefs(self):
        return {r for r in self.defs if r[0] == "s"}

    @property
    def vuses(self):
        return {r for r in self.uses if r[0] in "va"}

    @property
    def suses(self):
        return {r for r in self.uses if r[0] == "s"}


def required_ws(p, c):
    need = 0
    if p.kind == "VALU":
        pv = p.vdefs
        ps = p.sdefs
        if pv:
            if c.kind == "MFMA" and (pv & c.vuses):
                need = max(need, 2)
            if c.kind == "VALU":
                if c.is_dpp and (pv & c.vuses):
                    need = max(need, 2)
                if c.is_perm and (pv & c.vuses):
                    need = max(need, 2)
                if c.is_readlane and (pv & c.vuses):
                    need = max(need, 1)
                if p.is_trans and not c.is_trans and (pv & (c.vuses | c.vdefs)):
                    need = max(need, 1)
                if p.is_trans and c.is_trans and (pv & c.vuses):
                    need = max(need, 1)
                if p.is_perm and (pv & c.vuses):
                    need = max(need, 1)
        if ps:
            if c.kind == "VALU" and (ps & c.suses):
                need = max(need, 4 if c.is_readlane else 2)
            if c.kind == "VMEM" and (ps & c.suses):
                need = max(need, 5)
            if c.kind in ("SALU", "SMEM") and (ps & c.suses):
                need = max(need, 2)
            if c.kind == "MFMA" and (ps & {("s", "exec_lo"), ("s", "exec_hi")}):
                need = max(need, 4)
    if p.kind == "MFMA":
        d = p.vdefs
        big = p.passes == 8
        if c.kind == "MFMA":
            if d & c.srcAB:
                need = max(need, 12 if big else 8)
            if d & c.srcC:
                if not (c.srcC == d and c.passes == p.passes):
                    need = max(need, 10 if big else 6)
            if (d & c.vdefs) and not (c.srcC == d and c.vdefs == d):
                need = max(need, 10 if big else 6)
        elif c.kind in ("VALU", "DS", "VMEM"):
            if d & (c.vuses | c.vdefs):
                need = max(need, 12 if big else 8)
        if c.kind == "VALU" and (p.srcC & c.vdefs):
            need = max(need, 7 if big else 3)
        if c.kind in ("DS", "VMEM") and (p.srcC & c.vdefs):
            need = max(need, 7 if big else 3)
    if p.kind == "SALU":
        if ("s", "m0") in p.defs and c.is_lds_dma:
            need = max(need, 1)
        if (p.sdefs & {("s", "exec_lo"), ("s", "exec_hi")}) and c.kind == "VALU" and c.is_dpp:
            need = max(need, 2)
    if p.is_wide_store and p.store_data:
        if c.kind in ("VALU", "MFMA") and (p.store_data & c.vdefs):
            need = max(need, 2)
        elif c.kind in ("DS", "VMEM") and (p.store_data & c.vdefs):
            need = max(need, 1)
    return need


MAXLOOK = 14


class Asm:
    def __init__(self):
        self.items = []
        self.uid = 0

    def __call__(self, text):
        for ln in text.strip().split("\n"):
            ln = ln.strip()
            if not ln or ln.startswith(";"):
                continue
            if ln.endswith(":"):
                self.items.append(("label", ln[:-1]))
            else:
                self.items.append(Instr(ln))

    def label(self, name):
        self.items.append(("label", name))

    def raw(self, text):
        self.items.append(("raw", text))

    def comment(self, text):
        self.items.append(("raw", "; " + text))

    _guid = [0]

    def newlabel(self, base):
        Asm._guid[0] += 1
        return f"L_{base}_{Asm._guid[0]}"

    def pad(self, verbose=False):
        total = 0
        for _ in range(20):
            items = self.items
            labels = {it[1]: i for i, it in enumerate(items) if isinstance(it, tuple) and it[0] == "label"}
            branch_to = {}
            for i, it in enumerate(items):
                if isinstance(it, Instr) and it.mn.startswith(("s_cbranch", "s_branch")):
                    tgt = it.ops[0]
                    if tgt in labels:
                        branch_to.setdefault(labels[tgt], []).append(i)

            def preds(i):
                res = []
                it = items[i]
                if isinstance(it, tuple) and it[0] == "label":
                    res += branch_to.get(i, [])
                j = i - 1
                if j >= 0:
                    pj = items[j]
                    if not (isinstance(pj, Instr) and (pj.mn == "s_branch" or pj.mn == "s_endpgm")):
                        res.append(j)
                return res

            inserts = {}
            for i, c in enumerate(items):
                if not isinstance(c, Instr) or c.kind in ("NOP",):
                    continue
                need_more = 0
                stack = [(p, 0) for p in preds(i)]
                seen = {}
                while stack:
                    j, dist = stack.pop()
                    if dist >= MAXLOOK:
                        continue
                    if j in seen and seen[j] <= dist:
                        continue
                    seen[j] = dist
                    p = items[j]
                    if isinstance(p, Instr):
                        r = required_ws(p, c)
                        if r > dist:
                            need_more = max(need_more, r - dist)
                        nd = dist + p.ws
                    else:
                        nd = dist
                    for q in preds(j):
                        stack.append((q, nd))
                if need_more:
                    inserts[i] = need_more
            if not inserts:
                break
            new = []
            for i, it in enumerate(items):
                if i in inserts:
                    n = inserts[i]
                    total += n
                    if verbose:
                        print(f"pad {n} before: {it.text}")
                    while n > 0:
                        k = min(n, 16)
                        new.append(Instr(f"s_nop {k - 1}"))
                        n -= k
                new.append(it)
            self.items = new
        else:
            raise RuntimeError("hazard padding did not converge")
        return total

    def max_regs(self):
        mv = ms = ma = -1
        for it in self.items:
            if isinstance(it, Instr):
                for k, n in it.defs | it.uses:
                    if isinstance(n, int):
                        if k == "v":
                            mv = max(mv, n)
                        elif k == "s":
                            ms = max(ms, n)
                        elif k == "a":
                            ma = max(ma, n)
        return mv, ms, ma

    def text(self):
        out = []
        for it in self.items:
            if isinstance(it, Instr):
                out.append("    " + it.text)
            elif it[0] == "label":
                out.append(it[1] + ":")
            else:
                out.append(it[1])
        return "\n".join(out) + "\n"

    def count(self):
        return sum(1 for it in self.items if isinstance(it, Instr))


class Alloc:
    def __init__(self, start=0, limit=256):
        self.next = start
        self.limit = limit
        self.names = {}

    def get(self, name, cnt=1, align=1):
        n = (self.next + align - 1) // align * align
        self.next = n + cnt
        assert self.next <= self.limit, f"out of registers at {name}: {self.next} > {self.limit}"
        self.names[name] = (n, cnt)
        return n
```

```python
from common import *

S_GAM, S_J = 4, 5
SRD0, SRD1, SRD2, SRD3 = 40, 44, 48, 52
S_HI = 56
S_T0, S_T1, S_T2, S_T3 = 57, 58, 59, 60


def b_ids(a):
    a(f"s_lshr_b32 s{S_GAM}, s{S_WG}, 4")
    a(f"s_and_b32 s{S_J}, s{S_WG}, 15")
    a(f"s_mov_b32 s{S_HI}, 0xffff0000")


def gen_b1(a, sc1=""):
    c = Ctx(a)
    al = Alloc(1, 256)
    v_co, v_tq, v_base, v_basem, v_t = (al.get(n) for n in ("co", "tq", "base", "basem", "t"))
    v_w = al.get("woff")
    v_lw = al.get("lw")
    v_lr0, v_lr1, v_st = al.get("lr0"), al.get("lr1"), al.get("st")
    KR = [al.get(f"kr{i}", 4, 2) for i in range(7)]
    VR = [al.get(f"vr{i}", 4, 2) for i in range(4)]
    WR = [al.get(f"wr{i}", 4, 2) for i in range(4)]
    Wf = [al.get(f"wf{i}", 2, 2) for i in range(4)]
    Kf = [al.get(f"kf{i}", 2, 2) for i in range(7)]
    Vf = [al.get(f"vf{i}", 2, 2) for i in range(4)]
    AC = [al.get(f"ac{i}", 2, 2) for i in range(4)]
    PK = [al.get(f"pk{i}", 2, 2) for i in range(4)]
    RD = [al.get(f"rd{i}", 4, 2) for i in range(4)]

    make_srd(a, SRD0, S_K, SZ)
    make_srd(a, SRD1, S_V, SZ)
    make_srd(a, SRD2, S_SHK, D * 4 * 2)
    make_srd(a, SRD3, S_WS, SZ, add=OFF_U)
    a(f"v_and_b32 v{v_co}, 7, v0")
    a(f"v_lshrrev_b32 v{v_tq}, 3, v0")
    a(f"s_lshl_b32 s{S_T0}, s{S_J}, 7")
    a(f"s_lshl_b32 s{S_T1}, s{S_WAVE}, 5")
    a(f"s_add_u32 s{S_T0}, s{S_T0}, s{S_T1}")
    a(f"s_mul_i32 s{S_T1}, s{S_T0}, 1280")
    a(f"s_lshl_b32 s{S_T2}, s{S_GAM}, 7")
    a(f"s_add_u32 s{S_T1}, s{S_T1}, s{S_T2}")
    a(f"v_mul_u32_u24 v{v_base}, 5120, v{v_tq}")
    a(f"v_lshl_add_u32 v{v_base}, v{v_co}, 4, v{v_base}")
    a(f"v_add_u32 v{v_base}, s{S_T1}, v{v_base}")
    a(f"v_lshl_add_u32 v{v_t}, v{v_tq}, 2, s{S_T0}")
    a(f"v_subrev_u32 v{v_basem}, 3840, v{v_base}")
    a(f"v_cmp_eq_u32 vcc, 0, v{v_t}")
    a(f"v_mov_b32 v{v_t}, 0x80000000")
    a(f"v_cndmask_b32 v{v_basem}, v{v_basem}, v{v_t}, vcc")
    a(f"s_lshl_b32 s{S_T2}, s{S_GAM}, 9")
    a(f"v_lshl_add_u32 v{v_w}, v{v_co}, 6, s{S_T2}")
    for i in range(4):
        c.vmem(f"buffer_load_dwordx4 {vr(WR[i], 4)}, v{v_w}, s[{SRD2}:{SRD2 + 3}], 0 offen offset:{16 * i}", "w")
    for i in range(3):
        c.vmem(f"buffer_load_dwordx4 {vr(KR[i], 4)}, v{v_basem}, s[{SRD0}:{SRD0 + 3}], 0 offen offset:{1280 * i}", "k")
    for i in range(4):
        c.vmem(f"buffer_load_dwordx4 {vr(KR[3 + i], 4)}, v{v_base}, s[{SRD0}:{SRD0 + 3}], 0 offen offset:{1280 * i}", "k")
    for i in range(4):
        c.vmem(f"buffer_load_dwordx4 {vr(VR[i], 4)}, v{v_base}, s[{SRD1}:{SRD1 + 3}], 0 offen offset:{1280 * i}", "v")
    a(f"s_lshl_b32 s{S_T2}, s{S_WAVE}, 6")
    a(f"v_lshl_add_u32 v{v_t}, v{v_tq}, 3, s{S_T2}")
    a(f"v_lshl_add_u32 v{v_t}, v{v_co}, 4, v{v_t}")
    a(f"v_and_b32 v{v_t}, 255, v{v_t}")
    a(f"v_lshl_add_u32 v{v_lw}, v{v_co}, 11, v{v_t}")
    a(f"v_and_b32 v{v_t}, 15, v0")
    a(f"v_lshrrev_b32 v{v_st}, 4, v0")
    a(f"s_lshl_b32 s{S_T2}, s{S_WAVE}, 1")
    a(f"v_add_u32 v{v_lr0}, s{S_T2}, v{v_t}")
    a(f"v_add_u32 v{v_lr1}, 1, v{v_lr0}")
    a(f"v_and_b32 v{v_lr0}, 15, v{v_lr0}")
    a(f"v_and_b32 v{v_lr1}, 15, v{v_lr1}")
    a(f"v_lshlrev_b32 v{v_lr0}, 4, v{v_lr0}")
    a(f"v_lshlrev_b32 v{v_lr1}, 4, v{v_lr1}")
    a(f"s_lshl_b32 s{S_T2}, s{S_WAVE}, 12")
    a(f"v_lshl_add_u32 v{v_lr0}, v{v_st}, 8, v{v_lr0}")
    a(f"v_lshl_add_u32 v{v_lr1}, v{v_st}, 8, v{v_lr1}")
    a(f"v_add_u32 v{v_lr0}, s{S_T2}, v{v_lr0}")
    a(f"v_add_u32 v{v_lr1}, s{S_T2}, v{v_lr1}")
    a(f"s_lshl_b32 s{S_T2}, s{S_GAM}, 6")
    a(f"s_lshl_b32 s{S_T3}, s{S_WAVE}, 4")
    a(f"s_add_u32 s{S_T2}, s{S_T2}, s{S_T3}")
    a(f"s_lshl_b32 s{S_T2}, s{S_T2}, 12")
    a(f"s_lshl_b32 s{S_T3}, s{S_J}, 8")
    a(f"s_add_u32 s{S_T2}, s{S_T2}, s{S_T3}")
    a(f"v_lshlrev_b32 v{v_st}, 12, v{v_st}")
    a(f"v_lshl_add_u32 v{v_st}, v{v_t}, 4, v{v_st}")
    a(f"v_add_u32 v{v_st}, s{S_T2}, v{v_st}")
    c.wait_vm("v")
    for p in range(4):
        d = WR[p]
        a(f"v_lshlrev_b32 v{Wf[0]}, 16, v{d}")
        a(f"v_lshlrev_b32 v{Wf[0] + 1}, 16, v{d + 2}")
        a(f"v_and_b32 v{Wf[1]}, s{S_HI}, v{d}")
        a(f"v_and_b32 v{Wf[1] + 1}, s{S_HI}, v{d + 2}")
        a(f"v_lshlrev_b32 v{Wf[2]}, 16, v{d + 1}")
        a(f"v_lshlrev_b32 v{Wf[2] + 1}, 16, v{d + 3}")
        a(f"v_and_b32 v{Wf[3]}, s{S_HI}, v{d + 1}")
        a(f"v_and_b32 v{Wf[3] + 1}, s{S_HI}, v{d + 3}")
        for i in range(7):
            a(f"v_lshlrev_b32 v{Kf[i]}, 16, v{KR[i] + p}")
            a(f"v_and_b32 v{Kf[i] + 1}, s{S_HI}, v{KR[i] + p}")
        for t in range(4):
            a(f"v_pk_mul_f32 {vr(AC[t], 2)}, {vr(Kf[t + 3], 2)}, {vr(Wf[0], 2)}")
        for i in range(4):
            a(f"v_lshlrev_b32 v{Vf[i]}, 16, v{VR[i] + p}")
            a(f"v_and_b32 v{Vf[i] + 1}, s{S_HI}, v{VR[i] + p}")
        for jx in range(1, 4):
            for t in range(4):
                a(f"v_pk_fma_f32 {vr(AC[t], 2)}, {vr(Kf[t + 3 - jx], 2)}, {vr(Wf[jx], 2)}, {vr(AC[t], 2)}")
        for t in range(4):
            a(f"v_pk_mul_f32 {vr(AC[t], 2)}, {vr(AC[t], 2)}, {vr(Vf[t], 2)}")
        pa, pb = PK[2 * (p & 1)], PK[2 * (p & 1) + 1]
        a(f"v_cvt_pk_bf16_f32 v{pa}, v{AC[0]}, v{AC[1]}")
        a(f"v_cvt_pk_bf16_f32 v{pa + 1}, v{AC[2]}, v{AC[3]}")
        a(f"v_cvt_pk_bf16_f32 v{pb}, v{AC[0] + 1}, v{AC[1] + 1}")
        a(f"v_cvt_pk_bf16_f32 v{pb + 1}, v{AC[2] + 1}, v{AC[3] + 1}")
        c.ds(f"ds_write_b64 v{v_lw}, {vr(pa, 2)} offset:{(2 * p) * 256}")
        c.ds(f"ds_write_b64 v{v_lw}, {vr(pb, 2)} offset:{(2 * p + 1) * 256}")
    c.wait_lg0()
    a("s_barrier")
    for i in range(4):
        c.ds(f"ds_read_b128 {vr(RD[i], 4)}, v{v_lr0 if i < 2 else v_lr1} offset:{i * 1024}", f"r{i}")
    for i in range(4):
        c.wait_lg(f"r{i}")
        a(f"s_mov_b32 s{S_T0}, {i * 4 * 4096}")
        c.vmem(f"buffer_store_dwordx4 {vr(RD[i], 4)}, v{v_st}, s[{SRD3}:{SRD3 + 3}], s{S_T0} offen {sc1}")
    return al.next


U_PAD, K_PAD = 160, 96
K_OFF = U_PAD + 4096
CHS = K_OFF + K_PAD + 4096


def gen_b2(a, sc1_ld="", sc1_st=""):
    c = Ctx(a)
    al = Alloc(1, 256)
    v_g, v_t, v_dma, v_au, v_ak, v_ae, v_st = (al.get(n) for n in ("g", "t", "dma", "au", "ak", "ae", "st"))
    v_t2 = al.get("t2")
    KF = [al.get(f"K{n}", 4, 2) for n in range(16)]
    UF = [al.get(f"U{f}", 4, 2) for f in range(32)]
    Z = [al.get(f"Z{i}", 4, 2) for i in range(4)]
    ZT = [al.get(f"zt{i}") for i in range(3)]
    UE = [al.get(f"ue{i}") for i in range(2)]
    YP = [al.get(f"yp{i}") for i in range(4)]
    PKD = [al.get(f"pkd{i}") for i in range(2)]
    S_M1, S_M2, S_M3 = 62, 64, 66
    S_D = 61
    S_LB = 68

    a(f"s_lshl_b32 s{S_T0}, s{S_GAM}, 6")
    a(f"s_lshl_b32 s{S_T1}, s{S_J}, 2")
    a(f"s_add_u32 s{S_T0}, s{S_T0}, s{S_T1}")
    a(f"s_add_u32 s{S_T0}, s{S_T0}, s{S_WAVE}")
    a(f"s_lshr_b32 s{S_T1}, s{S_T0}, 1")
    a(f"s_lshl_b32 s{S_T1}, s{S_T1}, 2")
    a(f"s_load_dword s{S_D}, s[{S_SSMD}:{S_SSMD + 1}], s{S_T1}")
    make_srd(a, SRD0, S_WS, SZ, add=OFF_U)
    make_srd(a, SRD1, S_SSMK, SZ)
    make_srd(a, SRD2, S_WS, SZ, add=OFF_Y)
    a(f"s_mul_i32 s{S_LB}, s{S_WAVE}, {CHS}")
    a(f"s_lshl_b32 s{S_T2}, s{S_T0}, 12")
    a(f"v_lshl_add_u32 v{v_dma}, v0, 4, s{S_T2}")
    for i in range(4):
        a(f"s_add_u32 m0, s{S_LB}, {U_PAD + 1024 * i}")
        a(f"s_mov_b32 s{S_T3}, {1024 * i}")
        c.vmem(f"buffer_load_dwordx4 v{v_dma}, s[{SRD0}:{SRD0 + 3}], s{S_T3} offen {sc1_ld} lds", f"u{i}")
        a(f"s_add_u32 m0, s{S_LB}, {K_OFF + K_PAD + 1024 * i}")
        a("s_nop 0")
        c.vmem(f"buffer_load_dwordx4 v{v_dma}, s[{SRD1}:{SRD1 + 3}], s{S_T3} offen lds", f"k{i}")
    a(f"v_lshl_add_u32 v{v_st}, v0, 1, s{S_T2}")
    a(f"v_and_b32 v{v_t}, 15, v0")
    a(f"v_lshlrev_b32 v{v_t2}, 4, v{v_t}")
    a(f"v_add_u32 v{v_g}, {K_OFF - 160}, v{v_t2}")
    a(f"v_cmp_gt_u32 vcc, 10, v{v_t}")
    a(f"v_cndmask_b32 v{v_t2}, v{v_g}, v{v_t2}, vcc")
    a(f"v_add_u32 v{v_t2}, s{S_LB}, v{v_t2}")
    for i in range(4):
        a(f"v_mov_b32 v{Z[0] + i}, 0")
    c.ds(f"ds_write_b128 v{v_t2}, {vr(Z[0], 4)}")
    a(f"v_lshrrev_b32 v{v_g}, 4, v0")
    a(f"v_bfe_u32 v{v_t}, v0, 2, 2")
    a(f"v_and_b32 v{v_t2}, 3, v0")
    a(f"v_lshlrev_b32 v{v_au}, 3, v{v_t2}")
    a(f"v_lshlrev_b32 v{v_ak}, 3, v{v_t}")
    a(f"v_sub_u32 v{v_au}, v{v_au}, v{v_ak}")
    a(f"v_lshl_add_u32 v{v_ak}, v{v_g}, 6, v{v_ak}")
    a(f"v_lshlrev_b32 v{v_g}, 6, v{v_g}")
    a(f"v_sub_u32 v{v_au}, v{v_au}, v{v_g}")
    a(f"v_lshl_add_u32 v{v_ak}, v{v_t2}, 5, v{v_ak}")
    a(f"s_add_u32 s{S_T1}, s{S_LB}, {U_PAD + 96 - 32}")
    a(f"v_add_u32 v{v_au}, s{S_T1}, v{v_au}")
    a(f"s_add_u32 s{S_T1}, s{S_LB}, {K_OFF}")
    a(f"v_add_u32 v{v_ak}, s{S_T1}, v{v_ak}")
    a(f"s_add_u32 s{S_T1}, s{S_LB}, {U_PAD}")
    a(f"v_lshl_add_u32 v{v_ae}, v0, 1, s{S_T1}")
    a(f"s_mov_b32 s{S_M1}, 0")
    a(f"s_mov_b32 s{S_M1 + 1}, 0x80000000")
    a(f"s_mov_b32 s{S_M2}, 0")
    a(f"s_mov_b32 s{S_M2 + 1}, 0xc0000000")
    a(f"s_mov_b32 s{S_M3}, 0")
    a(f"s_mov_b32 s{S_M3 + 1}, 0xe0000000")
    a("s_waitcnt lgkmcnt(0)")
    c.lg = []
    a(f"s_and_b32 s{S_T1}, s{S_T0}, 1")
    a(f"s_lshl_b32 s{S_T2}, s{S_D}, 16")
    a(f"s_and_b32 s{S_D}, s{S_D}, s{S_HI}")
    a(f"s_cmp_eq_u32 s{S_T1}, 0")
    a(f"s_cselect_b32 s{S_D}, s{S_T2}, s{S_D}")
    for i in range(4):
        a(f"v_mov_b32 v{Z[3] + i}, 0")

    loadedU, loadedK = set(), set()
    waited = set()

    def need_chunk(tag):
        if tag not in waited:
            c.wait_vm(tag)
            waited.add(tag)

    def loadU(f):
        if f in loadedU or f > 31:
            return
        loadedU.add(f)
        need_chunk(f"u{(64 * f + 63) // 512}")
        c.ds(f"ds_read_b64_tr_b16 {vr(UF[f], 2)}, v{v_au} offset:{128 * f + 32}", f"U{f}")
        c.ds(f"ds_read_b64_tr_b16 {vr(UF[f] + 2, 2)}, v{v_au} offset:{128 * f}", f"U{f}")

    def loadK(n):
        if n in loadedK or n > 15:
            return
        loadedK.add(n)
        need_chunk(f"k{(128 * n + 127) // 512}")
        c.ds(f"ds_read_b64_tr_b16 {vr(KF[n], 2)}, v{v_ak} offset:{256 * n}", f"K{n}")
        c.ds(f"ds_read_b64_tr_b16 {vr(KF[n] + 2, 2)}, v{v_ak} offset:{256 * n + 32}", f"K{n}")

    def epi_ops(cp):
        z, zp = Z[cp % 4], Z[(cp - 1) % 4]
        ue = UE[cp % 2]
        y = YP[cp % 4]
        ops = []
        ops.append(lambda: c.ds(f"ds_read_u16_d16_hi v{ue}, v{v_ae} offset:{128 * cp}", f"E{cp}"))
        ops.append(lambda: a(f"v_cndmask_b32 v{ZT[2]}, v{z + 3}, v{zp + 3}, s[{S_M3}:{S_M3 + 1}]"))
        ops.append(lambda: a(f"v_cndmask_b32 v{ZT[1]}, v{z + 2}, v{zp + 2}, s[{S_M2}:{S_M2 + 1}]"))
        ops.append(lambda: a(f"v_cndmask_b32 v{ZT[0]}, v{z + 1}, v{zp + 1}, s[{S_M1}:{S_M1 + 1}]"))
        ops.append(lambda: a(f"v_add_f32_dpp v{ZT[1]}, v{ZT[2]}, v{ZT[1]} wave_ror:1 row_mask:0xf bank_mask:0xf"))
        ops.append(lambda: a(f"v_add_f32_dpp v{ZT[0]}, v{ZT[1]}, v{ZT[0]} wave_ror:1 row_mask:0xf bank_mask:0xf"))
        ops.append(lambda: a(f"v_add_f32_dpp v{y}, v{ZT[0]}, v{z} wave_ror:1 row_mask:0xf bank_mask:0xf"))

        def fin():
            c.wait_lg(f"E{cp}")
            a(f"v_fma_f32 v{y}, v{ue}, s{S_D}, v{y}")
        ops.append(fin)
        if cp & 1:
            pk = PKD[(cp >> 1) & 1]
            y0 = YP[(cp - 1) % 4]

            def st():
                a(f"v_cvt_pk_bf16_f32 v{pk}, v{y0}, v{y}")
                c.vmem(f"buffer_store_short v{pk}, v{v_st}, s[{SRD2}:{SRD2 + 3}], 0 offen offset:{128 * (cp - 1)} {sc1_st}", "st")
                c.vmem(f"buffer_store_short_d16_hi v{pk}, v{v_st}, s[{SRD2}:{SRD2 + 3}], 0 offen offset:{128 * cp} {sc1_st}", "st")
            ops.append(st)
        return ops

    loadK(0)
    loadU(0)
    loadU(1)
    pending = []
    for cp in range(32):
        N = (cp + 2) // 2
        loadU(cp + 2)
        if cp % 2 == 0:
            loadK(cp // 2 + 1)
        c.wait_lg([f"U{cp}", f"K{N - 1}"])
        z = Z[cp % 4]
        ops = list(pending)
        pending = []
        per = (len(ops) + N - 1) // N if N else 0
        for n in range(N):
            src_c = "0" if n == 0 else vr(z, 4)
            a(f"v_mfma_f32_16x16x32_bf16 {vr(z, 4)}, {vr(KF[n], 4)}, {vr(UF[cp - 2 * n], 4)}, {src_c}")
            for _ in range(per):
                if ops:
                    ops.pop(0)()
        while ops:
            ops.pop(0)()
        if cp >= 1:
            pending = epi_ops(cp - 1) if cp - 1 >= 0 else []
    for op in pending:
        op()
    for op in epi_ops(31):
        op()
    return al.next


def gen_b3(a, sc1_ld=""):
    c = Ctx(a)
    al = Alloc(1, 256)
    v_o, v_tt, v_t, v_q, v_dma, v_out = (al.get(n) for n in ("o", "tt", "t", "q", "dma", "out"))
    v_t2 = al.get("t2")
    v_la = [al.get(f"la{i}") for i in range(4)]
    QR = [al.get(f"q{i}", 4, 2) for i in range(4)]
    YV = [al.get(f"y{i}", 8, 2) for i in range(4)]
    QF = al.get("qf", 8, 2)
    OUT = [al.get(f"o{i}", 4, 2) for i in range(2)]
    make_srd(a, SRD0, S_Q, SZ)
    make_srd(a, SRD1, S_WS, SZ, add=OFF_Y)
    make_srd(a, SRD2, S_OUT, 2 * SZ)
    a(f"v_and_b32 v{v_o}, 7, v0")
    a(f"v_lshrrev_b32 v{v_tt}, 3, v0")
    a(f"s_lshl_b32 s{S_T0}, s{S_J}, 7")
    a(f"s_lshl_b32 s{S_T1}, s{S_WAVE}, 5")
    a(f"s_add_u32 s{S_T0}, s{S_T0}, s{S_T1}")
    a(f"v_add_u32 v{v_t}, s{S_T0}, v{v_tt}")
    a(f"s_lshl_b32 s{S_T2}, s{S_GAM}, 7")
    a(f"v_lshl_add_u32 v{v_t2}, v{v_o}, 4, s{S_T2}")
    a(f"v_mul_u32_u24 v{v_q}, 1280, v{v_t}")
    a(f"v_add_u32 v{v_q}, v{v_q}, v{v_t2}")
    a(f"v_mul_u32_u24 v{v_out}, 2560, v{v_t}")
    a(f"v_add_u32 v{v_out}, v{v_out}, v{v_t2}")
    a(f"v_add_u32 v{v_out}, 1280, v{v_out}")
    for i in range(4):
        a(f"s_mov_b32 s{S_T1}, {i * 8 * 1280}")
        c.vmem(f"buffer_load_dwordx4 {vr(QR[i], 4)}, v{v_q}, s[{SRD0}:{SRD0 + 3}], s{S_T1} offen", f"q{i}")
    a(f"v_and_b32 v{v_t}, 15, v0")
    a(f"v_lshrrev_b32 v{v_t2}, 4, v0")
    a(f"s_lshl_b32 s{S_T1}, s{S_GAM}, 6")
    a(f"s_lshl_b32 s{S_T2}, s{S_WAVE}, 4")
    a(f"s_add_u32 s{S_T1}, s{S_T1}, s{S_T2}")
    a(f"s_lshl_b32 s{S_T1}, s{S_T1}, 12")
    a(f"s_lshl_b32 s{S_T2}, s{S_J}, 8")
    a(f"s_add_u32 s{S_T1}, s{S_T1}, s{S_T2}")
    a(f"v_lshlrev_b32 v{v_t2}, 12, v{v_t2}")
    a(f"v_add_u32 v{v_t2}, s{S_T1}, v{v_t2}")
    a(f"s_lshl_b32 s{S_T2}, s{S_WAVE}, 1")
    return c, al, dict(v_t=v_t, v_t2=v_t2, v_dma=v_dma, v_o=v_o, v_tt=v_tt, v_la=v_la, QR=QR, YV=YV, QF=QF, OUT=OUT,
                       v_out=v_out, sc1_ld=sc1_ld)


def gen_b3_rest(a, c, al, r):
    v_t, v_t2, v_dma, v_o, v_tt, v_la = r["v_t"], r["v_t2"], r["v_dma"], r["v_o"], r["v_tt"], r["v_la"]
    QR, YV, QF, OUT, v_out, sc1_ld = r["QR"], r["YV"], r["QF"], r["OUT"], r["v_out"], r["sc1_ld"]
    for half in range(2):
        a(f"v_subrev_u32 v{v_dma}, s{S_T2}, v{v_t}")
        if half:
            a(f"v_subrev_u32 v{v_dma}, 1, v{v_dma}")
        a(f"v_and_b32 v{v_dma}, 15, v{v_dma}")
        a(f"v_lshl_add_u32 v{v_dma}, v{v_dma}, 4, v{v_t2}")
        for ii in range(2):
            i = 2 * half + ii
            a(f"s_lshl_b32 s{S_T3}, s{S_WAVE}, 12")
            a(f"s_add_u32 m0, s{S_T3}, {i * 1024}")
            a(f"s_mov_b32 s{S_T3}, {i * 4 * 4096}")
            c.vmem(f"buffer_load_dwordx4 v{v_dma}, s[{SRD1}:{SRD1 + 3}], s{S_T3} offen {sc1_ld} lds", "y")
    a(f"s_lshl_b32 s{S_T3}, s{S_WAVE}, 6")
    for i in range(4):
        a(f"v_lshl_add_u32 v{v_t}, v{v_o}, 4, s{S_T3}")
        if i:
            a(f"v_add_u32 v{v_t}, {16 * i}, v{v_t}")
        a(f"v_and_b32 v{v_t}, 255, v{v_t}")
        a(f"v_lshl_add_u32 v{v_t}, v{v_tt}, 1, v{v_t}")
        a(f"v_lshl_add_u32 v{v_la[i]}, v{v_o}, 11, v{v_t}")
    c.wait_vm("y")
    a("s_barrier")
    for i in range(4):
        for jj in range(8):
            c.ds(f"ds_read_u16_d16_hi v{YV[i] + jj}, v{v_la[i]} offset:{jj * 256}", f"y{i}")
    for i in range(4):
        for p in range(4):
            a(f"v_lshlrev_b32 v{QF + 2 * p}, 16, v{QR[i] + p}")
            a(f"v_and_b32 v{QF + 2 * p + 1}, s{S_HI}, v{QR[i] + p}")
        c.wait_lg(f"y{i}")
        for p in range(4):
            a(f"v_pk_mul_f32 {vr(QF + 2 * p, 2)}, {vr(QF + 2 * p, 2)}, {vr(YV[i] + 2 * p, 2)}")
        o = OUT[i & 1]
        for p in range(4):
            a(f"v_cvt_pk_bf16_f32 v{o + p}, v{QF + 2 * p}, v{QF + 2 * p + 1}")
        a(f"s_mov_b32 s{S_T1}, {i * 8 * 2560}")
        c.vmem(f"buffer_store_dwordx4 {vr(o, 4)}, v{v_out}, s[{SRD2}:{SRD2 + 3}], s{S_T1} offen")
    return al.next
```

```python
from asmlib import *

S, D = 2048, 640
KNAME = "concat_heads__sliding_local_dilated__ssm_conv_h3__prompt"
OFF_O = 0
OFF_U = 0x280000
OFF_Y = 0x500000
OFF_F = 0x780000
SZ = S * D * 2
LDS_BYTES = 81920
NB = 160
NA = 256

S_X, S_WQKV, S_WO, S_Q, S_K, S_V, S_SHK, S_SSMK = 16, 18, 20, 22, 24, 26, 28, 30
S_SSMD, S_OUT, S_DBG, S_WS = 32, 34, 36, 38
S_WG = 2
S_WAVE = 3
V_TID = 0


class Ctx:
    def __init__(self, a):
        self.a = a
        self.vm = []
        self.lg = []

    def __call__(self, t):
        self.a(t)

    def vmem(self, text, tag=None):
        self.a(text)
        self.vm.append(tag)

    def ds(self, text, tag=None):
        self.a(text)
        self.lg.append(tag)

    def _cnt(self, lst, tags):
        if not isinstance(tags, (list, tuple, set)):
            tags = [tags]
        last = -1
        for i, t in enumerate(lst):
            if t in tags:
                last = i
        assert last >= 0, f"tag {tags} not found"
        return len(lst) - 1 - last

    def wait_vm(self, tags):
        n = self._cnt(self.vm, tags)
        self.a(f"s_waitcnt vmcnt({min(n, 63)})")

    def wait_lg(self, tags):
        n = self._cnt(self.lg, tags)
        self.a(f"s_waitcnt lgkmcnt({min(n, 15)})")

    def wait_lg0(self):
        self.a("s_waitcnt lgkmcnt(0)")

    def wait_vm0(self):
        self.a("s_waitcnt vmcnt(0)")


def make_srd(a, dst, base_sgpr, nbytes, add=0):
    if add:
        a(f"s_add_u32 s{dst}, s{base_sgpr}, {hex(add)}")
        a(f"s_addc_u32 s{dst + 1}, s{base_sgpr + 1}, 0")
    else:
        a(f"s_mov_b32 s{dst}, s{base_sgpr}")
        a(f"s_mov_b32 s{dst + 1}, s{base_sgpr + 1}")
    a(f"s_mov_b32 s{dst + 2}, {hex(nbytes)}")
    a(f"s_mov_b32 s{dst + 3}, 0x20000")


def kernel_prologue(a, name, prefetch_bytes=0, end_label=None):
    a("s_load_dwordx16 s[16:31], s[0:1], 0")
    a("s_load_dwordx8 s[32:39], s[0:1], 64")
    if prefetch_bytes:
        a("s_getpc_b64 s[4:5]")
        a("v_lshlrev_b32 v1, 7, v0")
        a(f"v_cmp_gt_u32 vcc, {prefetch_bytes}, v1")
        a("s_and_saveexec_b64 s[6:7], vcc")
        lab = a.newlabel("nopf")
        a(f"s_cbranch_execz {lab}")
        a("global_load_dword v250, v1, s[4:5]")
        a.label(lab)
        a("s_mov_b64 exec, s[6:7]")
    a("v_lshrrev_b32 v1, 6, v0")
    a("v_and_b32 v0, 63, v0")
    a("v_readfirstlane_b32 s3, v1")
    a("s_waitcnt lgkmcnt(0)")


def kernel_descriptor(name, vgprs, sgprs=102):
    vg = (vgprs + 7) // 8 * 8
    return f""".section .rodata,"a"
.p2align 6
.amdhsa_kernel {name}
  .amdhsa_next_free_vgpr {vg}
  .amdhsa_next_free_sgpr {sgprs}
  .amdhsa_accum_offset {vg}
  .amdhsa_group_segment_fixed_size 0
  .amdhsa_kernarg_size 96
  .amdhsa_user_sgpr_count 2
  .amdhsa_user_sgpr_kernarg_segment_ptr 1
  .amdhsa_system_sgpr_workgroup_id_x 1
  .amdhsa_float_denorm_mode_32 3
.end_amdhsa_kernel
.text
"""


HEADER = """; Kernarg layout for this problem (96 bytes, ptrs only, base s[0:1]):
"""
```

```python
import sys
from common import *
import bpath
try:
    import apath
except ImportError:
    apath = None

def kernel(name, body):
    a = Asm()
    a.raw(f".globl {name}\n.p2align 8\n.type {name},@function")
    a.label(name)
    nv = body(a)
    a("s_endpgm")
    npad = a.pad()
    mv, ms, ma = a.max_regs()
    print(f"{name}: {a.count()} instrs, {npad} pad states, max v{mv} s{ms}", file=sys.stderr)
    return a.text() + kernel_descriptor(name, mv + 1)

def dispatch(a, fb, fa):
    end = a.newlabel("end"); la = a.newlabel("arole")
    a(f"s_cmp_ge_u32 s2, {NB + NA}")
    a(f"s_cbranch_scc1 {end}")
    kernel_prologue(a, "", prefetch_bytes=0)
    a(f"s_cmp_ge_u32 s2, {NB}")
    a(f"s_cbranch_scc1 {la}")
    if fb:
        bpath.b_ids(a)
        fb(a)
    a(f"s_branch {end}")
    a.label(la)
    if fa:
        fa(a)
    a.label(end)

def b3(a):
    c, al, r = bpath.gen_b3(a)
    bpath.gen_b3_rest(a, c, al, r)

def main(path, with_a=True):
    A1 = apath.gen_a1_full if (apath and with_a) else None
    A2 = apath.gen_a2_full if (apath and with_a) else None
    out = HEADER
    for k in ("k1_kernel", "k2_kernel", "k3_kernel"):
        out += f"; @launch kernel={k} grid=({NB + NA},1,1) block=(256,1,1) lds={LDS_BYTES}\n"
    out += '.amdgcn_target "amdgcn-amd-amdhsa--gfx950"\n.text\n'
    out += kernel("k1_kernel", lambda a: dispatch(a, bpath.gen_b1, A1))
    out += kernel("k2_kernel", lambda a: dispatch(a, bpath.gen_b2, A2))
    out += kernel("k3_kernel", lambda a: dispatch(a, b3, None))
    open(path, "w").write(out)

if __name__ == "__main__":
    main(sys.argv[1] if len(sys.argv) > 1 else "multi.s")
```

```python
import sys
from common import *
import bpath
try:
    import apath
except ImportError:
    apath = None

def kernel(name, body):
    a = Asm()
    a.raw(f".globl {name}\n.p2align 8\n.type {name},@function")
    a.label(name)
    nv = body(a)
    a("s_endpgm")
    npad = a.pad()
    mv, ms, ma = a.max_regs()
    print(f"{name}: {a.count()} instrs, {npad} pad states, max v{mv} s{ms}", file=sys.stderr)
    return a.text() + kernel_descriptor(name, mv + 1)

PF = 0
EXTRA = 0
def dispatch(a, fb, fa):
    end = a.newlabel("end"); la = a.newlabel("arole"); start = a.newlabel("start")
    a.label(start)
    a(f"s_cmp_ge_u32 s2, {NB + NA}")
    a(f"s_cbranch_scc1 {end}")
    kernel_prologue(a, "", prefetch_bytes=(f"({end}-{start})" if PF else 0))
    a(f"s_cmp_ge_u32 s2, {NB}")
    a(f"s_cbranch_scc1 {la}")
    if fb:
        bpath.b_ids(a)
        fb(a)
    a(f"s_branch {end}")
    a.label(la)
    if fa:
        fa(a)
    a.label(end)

def b3(a):
    c, al, r = bpath.gen_b3(a)
    bpath.gen_b3_rest(a, c, al, r)

def main(path, with_a=True):
    A1 = apath.gen_a1_full if (apath and with_a) else None
    A2 = apath.gen_a2_full if (apath and with_a) else None
    out = HEADER
    for k in ("k1_kernel", "k2_kernel", "k3_kernel"):
        out += f"; @launch kernel={k} grid=({NB + NA},1,1) block=(256,1,1) lds={LDS_BYTES}\n"
    for i in range(EXTRA):
        out += f"; @launch kernel=k4_kernel grid=({NB + NA},1,1) block=(256,1,1) lds={LDS_BYTES}\n"
    out += '.amdgcn_target "amdgcn-amd-amdhsa--gfx950"\n.text\n'
    out += kernel("k1_kernel", lambda a: dispatch(a, bpath.gen_b1, A1))
    out += kernel("k2_kernel", lambda a: dispatch(a, bpath.gen_b2, A2))
    out += kernel("k3_kernel", lambda a: dispatch(a, b3, None))
    if EXTRA:
        out += kernel("k4_kernel", lambda a: a("s_nop 0"))
    open(path, "w").write(out)

if __name__ == "__main__":
    import os
    PF = int(os.environ.get("PF", "0")); EXTRA = int(os.environ.get("EXTRA", "0"))
    main(sys.argv[1] if len(sys.argv) > 1 else "multi.s")
```

```python
from common import *
import common

S_RB, S_HP = 4, 5
SRD_X, SRD_W, SRD_O, SRD_OUT = 40, 44, 48, 52
S_T0, S_T1, S_T2, S_T3 = 57, 58, 59, 60
S_SW = [61, 62]
S_SX = [63, 64, 65, 66, 67]
S_WB, S_XB = 68, 69
S_X5 = [70, 71, 72]
S_XINC = 73
S_IT = 74
S_C = 75
S_M0, S_M1, S_M2 = 76, 78, 80

W_RING, W_SLOT = 0, 8192
X_RING, X_SLOT = 24576, 18432
DUMMY = 79872
NEG = -1.0e30

import struct


def f2u(x):
    return struct.unpack("<I", struct.pack("<f", x))[0]


def a_ids(a):
    a(f"s_sub_u32 s{S_T0}, s{S_WG}, {NB}")
    a(f"s_and_b32 s{S_T1}, s{S_T0}, 7")
    a(f"s_lshr_b32 s{S_T2}, s{S_T0}, 3")
    a(f"s_lshr_b32 s{S_RB}, s{S_T1}, 1")
    a(f"s_lshl_b32 s{S_RB}, s{S_RB}, 2")
    a(f"s_lshr_b32 s{S_T3}, s{S_T2}, 3")
    a(f"s_add_u32 s{S_RB}, s{S_RB}, s{S_T3}")
    a(f"s_and_b32 s{S_HP}, s{S_T1}, 1")
    a(f"s_lshl_b32 s{S_HP}, s{S_HP}, 3")
    a(f"s_and_b32 s{S_T3}, s{S_T2}, 7")
    a(f"s_add_u32 s{S_HP}, s{S_HP}, s{S_T3}")


FT = ["Q0", "Q1", "K0", "K1", "QKx", "V0", "V1", "Vx"]
FT_BASE = {"Q0": 0, "Q1": 40, "K0": 80, "K1": 120, "V0": 160, "V1": 200}
KTYPE = {"Q0", "Q1", "K0", "K1", "QKx"}


def gen_a1(a, sc1_st="", mid_hook=None):
    c = Ctx(a)
    al = Alloc(1, 256)
    vWd, vXd = al.get("wd"), al.get("xd")
    vWr = [al.get(f"wr{i}") for i in range(8)]
    vWh = [al.get(f"wh{i}") for i in range(2)]
    vXr = [al.get(f"xr{i}") for i in range(2)]
    vXh = [al.get(f"xh{i}") for i in range(2)]
    t0, t1, t2, t3, t4, t5 = (al.get(f"t{i}") for i in range(6))
    ACC = [[al.get(f"acc{T}_{f}", 4, 2) for f in range(8)] for T in range(2)]
    HAC = [al.get(f"hac{i}", 4, 2) for i in range(2)]
    fr0 = al.next + (al.next & 1)
    WF = [[al.get(f"wf{p}_{f}", 4, 2) for f in range(8)] for p in range(2)]
    WH = [[al.get(f"whf{p}_{f}", 4, 2) for f in range(2)] for p in range(2)]
    XF = [[al.get(f"xf{p}_{f}", 4, 2) for f in range(3)] for p in range(2)]
    fr1 = al.next

    make_srd(a, SRD_X, S_X, SZ)
    make_srd(a, SRD_W, S_WQKV, D * 3 * D * 2)
    make_srd(a, SRD_O, S_WS, SZ, add=OFF_O)

    a(f"v_lshrrev_b32 v{t0}, 4, v0")
    a(f"v_and_b32 v{t1}, 15, v0")
    a(f"s_bfe_u32 s{S_T0}, s{S_WAVE}, 0x10001")
    a(f"s_lshl_b32 s{S_T0}, s{S_T0}, 3")
    a(f"v_lshl_add_u32 v{t2}, v{t0}, 1, s{S_T0}")
    a(f"v_sub_u32 v{t2}, v{t1}, v{t2}")
    a(f"v_and_b32 v{t2}, 15, v{t2}")
    a(f"v_min_u32 v{t2}, 14, v{t2}")
    a(f"v_mul_u32_u24 v{t3}, 52, v{t2}")
    a(f"v_lshrrev_b32 v{t3}, 8, v{t3}")
    a(f"v_mul_u32_u24 v{t4}, 5, v{t3}")
    a(f"v_sub_u32 v{t4}, v{t2}, v{t4}")
    a(f"v_mul_u32_u24 v{vWd}, 3840, v{t0}")
    a(f"v_mul_u32_u24 v{t3}, 1280, v{t3}")
    a(f"v_add_u32 v{vWd}, v{vWd}, v{t3}")
    a(f"v_lshl_add_u32 v{vWd}, v{t4}, 4, v{vWd}")
    a(f"s_mul_i32 s{S_T0}, s{S_HP}, 80")
    a(f"v_add_u32 v{vWd}, s{S_T0}, v{vWd}")
    a(f"s_mul_i32 s{S_SW[0]}, s{S_WAVE}, {4 * 3840}")
    a(f"s_add_u32 s{S_SW[1]}, s{S_SW[0]}, {16 * 3840}")
    a(f"s_lshl_b32 s{S_WB}, s{S_WAVE}, 10")
    a(f"v_lshrrev_b32 v{t0}, 3, v0")
    a(f"v_and_b32 v{t1}, 7, v0")
    a(f"s_and_b32 s{S_T0}, s{S_WAVE}, 1")
    a(f"s_lshl_b32 s{S_T0}, s{S_T0}, 2")
    a(f"v_lshrrev_b32 v{t2}, 1, v{t0}")
    a(f"v_add_u32 v{t2}, s{S_T0}, v{t2}")
    a(f"v_xor_b32 v{t2}, v{t1}, v{t2}")
    a(f"v_mul_u32_u24 v{vXd}, 1280, v{t0}")
    a(f"v_lshl_add_u32 v{vXd}, v{t2}, 4, v{vXd}")
    a(f"s_lshl_b32 s{S_T0}, s{S_RB}, 7")
    a(f"s_lshl_b32 s{S_T1}, s{S_WAVE}, 3")
    a(f"s_add_i32 s{S_T0}, s{S_T0}, s{S_T1}")
    a(f"s_sub_i32 s{S_T0}, s{S_T0}, 16")
    for ii in range(5):
        a(f"s_add_i32 s{S_T1}, s{S_T0}, {32 * ii}")
        if ii == 0:
            a(f"s_max_i32 s{S_T1}, s{S_T1}, 0")
        a(f"s_mul_i32 s{S_SX[ii]}, s{S_T1}, 1280")
    a(f"s_lshl_b32 s{S_XB}, s{S_WAVE}, 10")
    a(f"s_add_u32 s{S_XB}, s{S_XB}, {X_RING}")
    a(f"s_cmp_lt_u32 s{S_WAVE}, 2")
    a(f"s_cselect_b32 s{S_SX[4]}, s{S_SX[4]}, 0x40000000")
    for sl in range(3):
        a(f"s_add_u32 s{S_T1}, s{S_XB}, {sl * X_SLOT + 16384}")
        a(f"s_cmp_lt_u32 s{S_WAVE}, 2")
        a(f"s_cselect_b32 s{S_X5[sl]}, s{S_T1}, {DUMMY}")

    def issue_w(slot, tag):
        for ii in range(2):
            a(f"s_add_u32 m0, s{S_WB}, {W_RING + slot * W_SLOT + ii * 4096}")
            c.vmem(f"buffer_load_dwordx4 v{vWd}, s[{SRD_W}:{SRD_W + 3}], s{S_SW[ii]} offen lds", tag)
        a(f"v_add_u32 v{vWd}, {32 * 3840}, v{vWd}")

    def issue_x_ops(slot, tag, inc):
        ops = []
        for ii in range(5):
            def op(ii=ii):
                if ii < 4:
                    a(f"s_add_u32 m0, s{S_XB}, {slot * X_SLOT + ii * 4096}")
                else:
                    a(f"s_mov_b32 m0, s{S_X5[slot]}")
                c.vmem(f"buffer_load_dwordx4 v{vXd}, s[{SRD_X}:{SRD_X + 3}], s{S_SX[ii]} offen lds", tag)
            ops.append(op)
        ops.append(lambda: a(f"v_add_u32 v{vXd}, {inc}, v{vXd}"))
        return ops

    for op in issue_x_ops(0, "x0", 128):
        op()
    issue_w(0, "w0")
    for op in issue_x_ops(1, "x1", 128):
        op()
    issue_w(1, "w1")
    issue_w(2, "w2")
    for op in issue_x_ops(2, "x2", 128):
        op()

    common.stamp(a, 1)
    a(f"v_lshrrev_b32 v{t0}, 4, v0")
    a(f"v_bfe_u32 v{t1}, v0, 2, 2")
    a(f"v_and_b32 v{t2}, 3, v0")
    a(f"v_lshl_add_u32 v{t3}, v{t0}, 3, v{t1}")
    a(f"v_lshlrev_b32 v{t3}, 8, v{t3}")
    a(f"v_and_b32 v{t4}, 1, v{t0}")
    a(f"v_lshlrev_b32 v{t4}, 7, v{t4}")
    a(f"v_lshl_add_u32 v{t4}, v{t1}, 5, v{t4}")
    for f, name in enumerate(FT):
        if name in FT_BASE:
            a(f"v_lshl_add_u32 v{t5}, v{t2}, 3, v{t4}")
            a(f"v_add_u32 v{t5}, {FT_BASE[name]}, v{t5}")
        elif name == "QKx":
            a(f"v_mul_u32_u24 v{t5}, 40, v{t2}")
            a(f"v_add_u32 v{t5}, v{t5}, v{t4}")
            a(f"v_add_u32 v{t5}, 32, v{t5}")
        else:
            a(f"v_mul_u32_u24 v{t5}, 40, v{t2}")
            a(f"v_add_u32 v{t5}, 192, v{t5}")
            a(f"v_lshlrev_b32 v{vWr[f]}, 3, v{t2}")
            a(f"v_add_u32 v{vWr[f]}, 160, v{vWr[f]}")
            a(f"v_cmp_gt_u32 vcc, 2, v{t2}")
            a(f"v_cndmask_b32 v{t5}, v{vWr[f]}, v{t5}, vcc")
            a(f"v_add_u32 v{t5}, v{t5}, v{t4}")
        a(f"v_and_b32 v{t5}, 255, v{t5}")
        a(f"v_add_u32 v{vWr[f]}, v{t3}, v{t5}")
    a(f"v_mov_b32 v{vWh[0]}, v{vWr[2]}")
    a(f"v_mov_b32 v{vWh[1]}, v{vWr[5]}")
    for wv, (fk, fv) in ((1, (3, 6)), (2, (4, 7))):
        a(f"s_cmp_eq_u32 s{S_WAVE}, {wv}")
        a("s_cselect_b64 vcc, -1, 0")
        a(f"v_cndmask_b32 v{vWh[0]}, v{vWh[0]}, v{vWr[fk]}, vcc")
        a(f"v_cndmask_b32 v{vWh[1]}, v{vWh[1]}, v{vWr[fv]}, vcc")
    a(f"v_and_b32 v{t1}, 15, v0")
    a(f"v_bfe_u32 v{t2}, v0, 1, 3")
    a(f"v_xor_b32 v{t2}, v{t0}, v{t2}")
    a(f"v_lshlrev_b32 v{t1}, 7, v{t1}")
    a(f"v_lshl_add_u32 v{vXh[0]}, v{t2}, 4, v{t1}")
    a(f"v_xor_b32 v{vXh[1]}, 64, v{vXh[0]}")
    a(f"v_add_u32 v{vXh[0]}, {X_RING}, v{vXh[0]}")
    a(f"v_add_u32 v{vXh[1]}, {X_RING}, v{vXh[1]}")
    a(f"s_lshl_b32 s{S_T0}, s{S_WAVE}, 12")
    a(f"s_add_u32 s{S_T0}, s{S_T0}, 2048")
    a(f"v_add_u32 v{vXr[0]}, s{S_T0}, v{vXh[0]}")
    a(f"v_add_u32 v{vXr[1]}, s{S_T0}, v{vXh[1]}")
    for T in range(2):
        for f in range(8):
            for i in range(4):
                a(f"v_mov_b32 v{ACC[T][f] + i}, 0")
    for h in range(2):
        for i in range(4):
            a(f"v_mov_b32 v{HAC[h] + i}, 0")

    def frag_reads(s):
        p = s & 1
        wo = W_RING + (s % 3) * W_SLOT
        xo = ((s >> 1) % 3) * X_SLOT
        sg = s & 1
        ops = []
        ops.append(lambda: c.ds(f"ds_read_b128 {vr(XF[p][0], 4)}, v{vXr[sg]} offset:{xo}"))
        ops.append(lambda: c.ds(f"ds_read_b128 {vr(XF[p][1], 4)}, v{vXr[sg]} offset:{xo + 2048}"))
        for f in range(8):
            for h in range(2):
                ops.append(lambda f=f, h=h: c.ds(f"ds_read_b64_tr_b16 {vr(WF[p][f] + 2 * h, 2)}, v{vWr[f]} offset:{wo + 1024 * h}"))
        ops.append(lambda: c.ds(f"ds_read_b128 {vr(XF[p][2], 4)}, v{vXh[sg]} offset:{xo}"))
        for f in range(2):
            for h in range(2):
                ops.append(lambda f=f, h=h: c.ds(f"ds_read_b64_tr_b16 {vr(WH[p][f] + 2 * h, 2)}, v{vWh[f]} offset:{wo + 1024 * h}"))
        return ops

    def mfmas(s):
        p = s & 1
        ops = []
        for f, name in enumerate(FT):
            for T in range(2):
                if name in KTYPE:
                    A, B = WF[p][f], XF[p][T]
                else:
                    A, B = XF[p][T], WF[p][f]
                ops.append(lambda f=f, T=T, A=A, B=B: a(f"v_mfma_f32_16x16x32_bf16 {vr(ACC[T][f], 4)}, {vr(A, 4)}, {vr(B, 4)}, {vr(ACC[T][f], 4)}"))
        ops.append(lambda: a(f"v_mfma_f32_16x16x32_bf16 {vr(HAC[0], 4)}, {vr(WH[p][0], 4)}, {vr(XF[p][2], 4)}, {vr(HAC[0], 4)}"))
        ops.append(lambda: a(f"v_mfma_f32_16x16x32_bf16 {vr(HAC[1], 4)}, {vr(XF[p][2], 4)}, {vr(WH[p][1], 4)}, {vr(HAC[1], 4)}"))
        return ops

    def step(u, dma=True, reads=True, top=True):
        if top:
            a("s_waitcnt vmcnt(7) lgkmcnt(0)")
            a("s_barrier")
        else:
            a("s_waitcnt lgkmcnt(0)")
        mf = mfmas(u)
        others = []
        if dma:
            def wop():
                issue_w(u % 3, "w")
            others.append(wop)
        rd = frag_reads(u + 1) if reads else []
        xo = []
        if dma and (u & 1):
            xo = issue_x_ops(((u - 1) // 2) % 3, "x", "s%d" % S_XINC)
        rd = list(rd)
        extra = others + xo
        pool = []
        while rd or extra:
            for _ in range(3):
                if rd:
                    pool.append(rd.pop(0))
            if extra:
                pool.append(extra.pop(0))
        n = len(mf)
        per = [len(pool) // n + (1 if i < len(pool) % n else 0) for i in range(n)]
        for i, m in enumerate(mf):
            m()
            for _ in range(per[i]):
                pool.pop(0)()

    a("s_waitcnt vmcnt(14)")
    a("s_barrier")
    common.stamp(a, 2)
    for op in frag_reads(0):
        op()
    a(f"s_mov_b32 s{S_IT}, 0")
    a(f"s_movk_i32 s{S_XINC}, 128")
    loop = a.newlabel("a1loop")
    a.label(loop)
    for u in range(6):
        if u == 1:
            a(f"s_cmp_eq_u32 s{S_IT}, 2")
            a(f"s_cselect_b32 s{S_XINC}, 0x40000000, 128")
        if u == 3:
            a(f"s_movk_i32 s{S_XINC}, 128")
        step(u)
    a(f"s_add_u32 s{S_IT}, s{S_IT}, 1")
    a(f"s_cmp_lt_u32 s{S_IT}, 3")
    a(f"s_cbranch_scc1 {loop}")
    common.stamp(a, 3)
    step(0, dma=False, reads=True)
    step(1, dma=False, reads=False, top=False)

    a("s_waitcnt vmcnt(0)")
    a("s_barrier")
    common.stamp(a, 4)
    if mid_hook:
        mid_hook(a, c)
    e = Alloc(fr0, 256)
    QT = [[e.get(f"qt{T}{h}", 4, 2) for h in range(2)] for T in range(2)]
    KT = [[e.get(f"kt{P}{h}", 4, 2) for h in range(2)] for P in range(3)]
    VS = [e.get(f"vs{h}", 6, 2) for h in range(2)]
    VX = e.get("vx", 6, 2)
    XP = [e.get(f"xp{P}", 2, 2) for P in range(3)]
    HP = [e.get(f"hp{i}", 2, 2) for i in range(2)]
    BC = e.get("bc", 4, 2)
    BP = e.get("bp", 4, 2)
    BPA = e.get("bpa", 4, 2)
    ONES = e.get("ones", 4, 2)
    vEw, vEh, vEr = e.get("ew"), e.get("eh"), e.get("er")
    vSt, vSx = e.get("st"), e.get("sx")
    OM = [e.get(f"om{T}", 4, 2) for T in range(2)]
    OXP = [e.get(f"oxp{T}", 2, 2) for T in range(2)]
    PT = [e.get(f"pt{h}", 4, 2) for h in range(2)]

    def pack(dst, src):
        a(f"v_cvt_pk_bf16_f32 v{dst}, v{src}, v{src + 1}")
        a(f"v_cvt_pk_bf16_f32 v{dst + 1}, v{src + 2}, v{src + 3}")

    EX = 0
    a(f"s_mul_i32 s{S_T0}, s{S_WAVE}, 3072")
    a(f"v_lshl_add_u32 v{vEr}, v0, 3, s{S_T0}")
    a(f"v_add_u32 v{vEw}, 3072, v{vEr}")
    a(f"s_lshl_b32 s{S_T1}, s{S_WAVE}, 9")
    a(f"s_cmp_lt_u32 s{S_WAVE}, 3")
    a(f"s_cselect_b32 s{S_T1}, s{S_T1}, {5 * 3072}")
    a(f"v_lshl_add_u32 v{vEh}, v0, 3, s{S_T1}")
    for h in range(2):
        pack(KT[2][h], ACC[1][2 + h])
        pack(VS[h] + 4, ACC[1][5 + h])
    pack(XP[2], ACC[1][4])
    pack(VX + 4, ACC[1][7])
    pack(HP[0], HAC[0])
    pack(HP[1], HAC[1])
    c.ds(f"ds_write_b64 v{vEw}, {vr(KT[2][0], 2)} offset:{EX + 0}")
    c.ds(f"ds_write_b64 v{vEw}, {vr(KT[2][1], 2)} offset:{EX + 512}")
    c.ds(f"ds_write_b64 v{vEw}, {vr(XP[2], 2)} offset:{EX + 1024}")
    c.ds(f"ds_write_b64 v{vEw}, {vr(VS[0] + 4, 2)} offset:{EX + 1536}")
    c.ds(f"ds_write_b64 v{vEw}, {vr(VS[1] + 4, 2)} offset:{EX + 2048}")
    c.ds(f"ds_write_b64 v{vEw}, {vr(VX + 4, 2)} offset:{EX + 2560}")
    c.ds(f"ds_write_b64 v{vEh}, {vr(HP[0], 2)} offset:{EX + 0}")
    c.ds(f"ds_write_b64 v{vEh}, {vr(HP[1], 2)} offset:{EX + 1536}")
    for h in range(2):
        pack(KT[1][h], ACC[0][2 + h])
        pack(VS[h] + 2, ACC[0][5 + h])
        for T in range(2):
            pack(QT[T][h], ACC[T][h])
    pack(XP[1], ACC[0][4])
    pack(VX + 2, ACC[0][7])
    a(f"v_and_b32 v{t0}, 15, v0")
    a(f"v_lshrrev_b32 v{t1}, 4, v0")
    a(f"v_lshlrev_b32 v{t1}, 2, v{t1}")
    a(f"v_sub_u32 v{t0}, v{t0}, v{t1}")
    a(f"v_mov_b32 v{t2}, {hex(f2u(NEG))}")
    for r in range(4):
        for (dst, add) in ((BC + r, -r), (BP + r, 16 - r)):
            a(f"v_add_u32 v{t1}, {add}, v{t0}")
            a(f"v_and_b32 v{t3}, 0xfffffff1, v{t1}")
            a(f"v_cmp_eq_u32 vcc, 0, v{t3}")
            a(f"v_cndmask_b32_e64 v{dst}, v{t2}, 0, vcc")
    a(f"s_or_b32 s{S_T0}, s{S_RB}, s{S_WAVE}")
    a(f"s_cmp_eq_u32 s{S_T0}, 0")
    a("s_cselect_b64 vcc, -1, 0")
    for r in range(4):
        a(f"v_cndmask_b32 v{BPA + r}, v{BP + r}, v{t2}, vcc")
        a(f"v_mov_b32 v{ONES + r}, 0x3f803f80")
    a(f"s_mov_b32 s{S_C}, {hex(f2u(20 ** -0.5 * 1.4426950408889634))}")
    a(f"s_mov_b32 s{S_M0}, 0xffff")
    a(f"s_mov_b32 s{S_M0 + 1}, 0")
    a(f"s_mov_b32 s{S_M1}, 0xffff0000")
    a(f"s_mov_b32 s{S_M1 + 1}, 0")
    c.wait_lg0()
    a("s_barrier")
    c.ds(f"ds_read_b64 {vr(KT[0][0], 2)}, v{vEr} offset:{EX + 0}")
    c.ds(f"ds_read_b64 {vr(KT[0][1], 2)}, v{vEr} offset:{EX + 512}")
    c.ds(f"ds_read_b64 {vr(XP[0], 2)}, v{vEr} offset:{EX + 1024}")
    c.ds(f"ds_read_b64 {vr(VS[0], 2)}, v{vEr} offset:{EX + 1536}")
    c.ds(f"ds_read_b64 {vr(VS[1], 2)}, v{vEr} offset:{EX + 2048}")
    c.ds(f"ds_read_b64 {vr(VX, 2)}, v{vEr} offset:{EX + 2560}")

    def xsplit(P, T):
        for i in range(2):
            a(f"v_mov_b32 v{KT[P][0] + 2 + i}, v{XP[P] + i}")
        for i in range(2):
            a(f"v_permlane32_swap_b32 v{XP[P] + i}, v{KT[P][0] + 2 + i}")
        for i in range(2):
            a(f"v_mov_b32 v{KT[P][1] + 2 + i}, v{KT[P][0] + 2 + i}")
        if T is not None:
            for i in range(2):
                a(f"v_cndmask_b32_e64 v{QT[T][0] + 2 + i}, 0, v{XP[P] + i}, s[{S_M0}:{S_M0 + 1}]")
                a(f"v_cndmask_b32_e64 v{QT[T][1] + 2 + i}, 0, v{XP[P] + i}, s[{S_M1}:{S_M1 + 1}]")

    common.stamp(a, 5)
    xsplit(1, 0)
    xsplit(2, 1)
    c.wait_lg0()
    xsplit(0, None)

    free4 = [ACC[T][f] for T in range(2) for f in range(8)]

    def unit(T, h):
        base = 8 * h
        Sp, Sc, O, Ox, Sm = free4[base + 0], free4[base + 1], free4[base + 2], free4[base + 3], free4[base + 4]
        m1, m2 = free4[base + 5], free4[base + 5] + 1
        mt = free4[base + 5] + 2
        inv = free4[base + 5] + 3
        L = []
        Pk, Ck = (0, 1) if T == 0 else (1, 2)
        bp = BPA if T == 0 else BP
        L.append(f"v_mfma_f32_16x16x32_bf16 {vr(Sp, 4)}, {vr(KT[Pk][h], 4)}, {vr(QT[T][h], 4)}, {vr(bp, 4)}")
        L.append(f"v_mfma_f32_16x16x32_bf16 {vr(Sc, 4)}, {vr(KT[Ck][h], 4)}, {vr(QT[T][h], 4)}, {vr(BC, 4)}")
        L.append(f"v_max3_f32 v{m1}, v{Sp}, v{Sp + 1}, v{Sp + 2}")
        L.append(f"v_max3_f32 v{m2}, v{Sc}, v{Sc + 1}, v{Sc + 2}")
        L.append(f"v_max3_f32 v{m1}, v{m1}, v{Sp + 3}, v{Sc + 3}")
        L.append(f"v_max_f32 v{m1}, v{m1}, v{m2}")
        L.append(f"v_mov_b32 v{mt}, v{m1}")
        L.append(f"v_permlane32_swap_b32 v{m1}, v{mt}")
        L.append(f"v_max_f32 v{m1}, v{m1}, v{mt}")
        L.append(f"v_mov_b32 v{mt}, v{m1}")
        L.append(f"v_permlane16_swap_b32 v{m1}, v{mt}")
        L.append(f"v_max_f32 v{m1}, v{m1}, v{mt}")
        L.append(f"v_mul_f32 v{m1}, s{S_C}, v{m1}")
        for i in range(4):
            L.append(f"v_fma_f32 v{Sp + i}, v{Sp + i}, s{S_C}, -v{m1}")
            L.append(f"v_fma_f32 v{Sc + i}, v{Sc + i}, s{S_C}, -v{m1}")
        for i in range(4):
            L.append(f"v_exp_f32 v{Sp + i}, v{Sp + i}")
            L.append(f"v_exp_f32 v{Sc + i}, v{Sc + i}")
        pt = PT[h]
        L.append(f"v_cvt_pk_bf16_f32 v{pt}, v{Sp}, v{Sp + 1}")
        L.append(f"v_cvt_pk_bf16_f32 v{pt + 1}, v{Sp + 2}, v{Sp + 3}")
        L.append(f"v_cvt_pk_bf16_f32 v{pt + 2}, v{Sc}, v{Sc + 1}")
        L.append(f"v_cvt_pk_bf16_f32 v{pt + 3}, v{Sc + 2}, v{Sc + 3}")
        vo = 2 * T
        L.append(f"v_mfma_f32_16x16x32_bf16 {vr(Sm, 4)}, {vr(ONES, 4)}, {vr(pt, 4)}, 0")
        L.append(f"v_mfma_f32_16x16x32_bf16 {vr(O, 4)}, {vr(VS[h] + vo, 4)}, {vr(pt, 4)}, 0")
        L.append(f"v_mfma_f32_16x16x32_bf16 {vr(Ox, 4)}, {vr(VX + vo, 4)}, {vr(pt, 4)}, 0")
        L.append(f"v_rcp_f32 v{inv}, v{Sm}")
        for i in range(4):
            L.append(f"v_mul_f32 v{O + i}, v{O + i}, v{inv}")
        L.append(f"v_cvt_pk_bf16_f32 v{OM[T] + 2 * h}, v{O}, v{O + 1}")
        L.append(f"v_cvt_pk_bf16_f32 v{OM[T] + 2 * h + 1}, v{O + 2}, v{O + 3}")
        return L, Ox, inv

    a(f"s_lshl_b32 s{S_T0}, s{S_RB}, 3")
    a(f"s_lshl_b32 s{S_T1}, s{S_WAVE}, 1")
    a(f"s_add_u32 s{S_T0}, s{S_T0}, s{S_T1}")
    a(f"s_mul_i32 s{S_T0}, s{S_T0}, 20480")
    a(f"s_lshl_b32 s{S_T1}, s{S_HP}, 10")
    a(f"s_add_u32 s{S_T1}, s{S_T1}, s{S_T0}")
    a(f"v_lshl_add_u32 v{vSt}, v0, 4, s{S_T1}")
    a(f"s_lshr_b32 s{S_T1}, s{S_HP}, 2")
    a(f"s_add_u32 s{S_T1}, s{S_T1}, 16")
    a(f"s_lshl_b32 s{S_T1}, s{S_T1}, 10")
    a(f"s_add_u32 s{S_T1}, s{S_T1}, s{S_T0}")
    a(f"s_and_b32 s{S_T2}, s{S_HP}, 3")
    a(f"s_lshl_b32 s{S_T2}, s{S_T2}, 8")
    a(f"s_add_u32 s{S_T1}, s{S_T1}, s{S_T2}")
    a(f"v_and_b32 v{t0}, 15, v0")
    a(f"v_lshlrev_b32 v{t0}, 4, v{t0}")
    a(f"v_bfe_u32 v{t1}, v0, 4, 1")
    a(f"v_lshl_add_u32 v{t0}, v{t1}, 3, v{t0}")
    a(f"v_add_u32 v{vSx}, s{S_T1}, v{t0}")

    for T in range(2):
        L0, ox0, inv0 = unit(T, 0)
        L1, ox1, inv1 = unit(T, 1)
        for x, y in zip(L0, L1):
            a(x)
            a(y)
        for i in range(4):
            a(f"v_cndmask_b32_e64 v{ox1 + i}, v{ox1 + i}, v{ox0 + i}, s[{S_M0}:{S_M0 + 1}]")
        a(f"v_cndmask_b32_e64 v{inv1}, v{inv1}, v{inv0}, s[{S_M0}:{S_M0 + 1}]")
        for i in range(4):
            a(f"v_mul_f32 v{ox1 + i}, v{ox1 + i}, v{inv1}")
        a(f"v_cvt_pk_bf16_f32 v{OXP[T]}, v{ox1}, v{ox1 + 1}")
        a(f"v_cvt_pk_bf16_f32 v{OXP[T] + 1}, v{ox1 + 2}, v{ox1 + 3}")
        a(f"s_mov_b32 s{S_T0}, {T * 20480}")
        c.vmem(f"buffer_store_dwordx4 {vr(OM[T], 4)}, v{vSt}, s[{SRD_O}:{SRD_O + 3}], s{S_T0} offen {sc1_st}", "ost")
        a("s_mov_b32 exec_hi, 0")
        c.vmem(f"buffer_store_dwordx2 {vr(OXP[T], 2)}, v{vSx}, s[{SRD_O}:{SRD_O + 3}], s{S_T0} offen {sc1_st}", "ost")
        a("s_mov_b32 exec_hi, -1")
    return c


S_WOL, S_WOM, S_WOX, S_WOT = 63, 64, 65, 66
S_CB = 67


def gen_a2_wo_dma(a, c, vM, vX, tmp, ksteps, lds_of):
    for ks in ksteps:
        if ks < 16:
            a(f"s_add_u32 s{S_WOT}, s{S_WOM}, {40 * ks * 1280}")
            v = vM
        else:
            a(f"s_add_u32 s{S_WOT}, s{S_WOX}, {160 * (ks - 16) * 1280}")
            v = vX
        a(f"s_add_u32 m0, s{S_WOL}, {lds_of(ks)}")
        c.vmem(f"buffer_load_dwordx4 v{v}, s[{SRD_W}:{SRD_W + 3}], s{S_WOT} offen lds", f"wo{ks}")


def a2_wo_setup(a, vM, vX, t0, t1, t2):
    make_srd(a, SRD_W, S_WO, D * D * 2)
    a(f"v_lshrrev_b32 v{t0}, 3, v0")
    a(f"v_and_b32 v{t1}, 7, v0")
    a(f"v_bfe_u32 v{t2}, v0, 4, 2")
    a(f"v_lshlrev_b32 v{t2}, 1, v{t2}")
    a(f"v_sub_u32 v{t1}, v{t1}, v{t2}")
    a(f"v_and_b32 v{t1}, 7, v{t1}")
    a(f"s_lshl_b32 s{S_WOT}, s{S_CB}, 7")
    a(f"v_lshl_add_u32 v{t1}, v{t1}, 4, s{S_WOT}")
    a(f"v_mul_u32_u24 v{vM}, 1280, v{t0}")
    a(f"v_add_u32 v{vM}, v{vM}, v{t1}")
    a(f"v_lshrrev_b32 v{t2}, 2, v{t0}")
    a(f"v_mul_u32_u24 v{t2}, 40, v{t2}")
    a(f"v_and_b32 v{t0}, 3, v{t0}")
    a(f"v_add_u32 v{t2}, v{t2}, v{t0}")
    a(f"v_mul_u32_u24 v{vX}, 1280, v{t2}")
    a(f"v_add_u32 v{vX}, v{vX}, v{t1}")
    a(f"s_lshr_b32 s{S_WOT}, s{S_WAVE}, 1")
    a(f"s_mul_i32 s{S_WOT}, s{S_WOT}, 20")
    a(f"s_and_b32 s{S_WOL}, s{S_WAVE}, 1")
    a(f"s_lshl_b32 s{S_WOM}, s{S_WOL}, 3")
    a(f"s_add_u32 s{S_WOM}, s{S_WOM}, s{S_WOT}")
    a(f"s_mul_i32 s{S_WOM}, s{S_WOM}, 1280")
    a(f"s_mul_i32 s{S_WOX}, s{S_WOL}, 80")
    a(f"s_add_u32 s{S_WOX}, s{S_WOX}, s{S_WOT}")
    a(f"s_add_u32 s{S_WOX}, s{S_WOX}, 16")
    a(f"s_mul_i32 s{S_WOX}, s{S_WOX}, 1280")
    a(f"s_lshl_b32 s{S_WOL}, s{S_WAVE}, 10")


def gen_a2_main(a, c, al, sc1_ld="", lds_of=lambda ks: ks * 4096, wait_wo=True):
    t0, t1, t2, t3 = (al.get(f"u{i}") for i in range(4))
    vO = al.get("vo")
    vA = [al.get(f"va{i}") for i in range(4)]
    OF = [[al.get(f"of{T}_{k}", 4, 2) for k in range(20)] for T in range(2)]
    ACC = [[al.get(f"a2acc{T}_{ct}", 4, 2) for ct in range(4)] for T in range(2)]
    WFR = [[al.get(f"a2w{p}_{ct}", 4, 2) for ct in range(4)] for p in range(2)]
    make_srd(a, SRD_OUT, S_OUT, 2 * SZ)
    a(f"s_lshl_b32 s{S_T0}, s{S_RB}, 3")
    a(f"s_lshl_b32 s{S_T2}, s{S_WAVE}, 1")
    a(f"s_add_u32 s{S_T0}, s{S_T0}, s{S_T2}")
    a(f"s_mul_i32 s{S_T0}, s{S_T0}, 20480")
    a(f"v_lshl_add_u32 v{vO}, v0, 4, s{S_T0}")
    for k in range(20):
        for T in range(2):
            a(f"s_mov_b32 s{S_T0}, {T * 20480 + k * 1024}")
            c.vmem(f"buffer_load_dwordx4 {vr(OF[T][k], 4)}, v{vO}, s[{SRD_O}:{SRD_O + 3}], s{S_T0} offen {sc1_ld}", f"o{k}")
    a(f"v_lshrrev_b32 v{t0}, 4, v0")
    a(f"v_bfe_u32 v{t1}, v0, 2, 2")
    a(f"v_and_b32 v{t2}, 3, v0")
    a(f"v_lshl_add_u32 v{t3}, v{t0}, 2, v{t1}")
    a(f"v_lshlrev_b32 v{t3}, 7, v{t3}")
    a(f"v_and_b32 v{t0}, 1, v{t0}")
    a(f"v_lshlrev_b32 v{t0}, 1, v{t0}")
    a(f"v_lshrrev_b32 v{t1}, 1, v{t1}")
    a(f"v_add_u32 v{t0}, v{t0}, v{t1}")
    a(f"v_lshlrev_b32 v{t0}, 5, v{t0}")
    a(f"v_lshl_add_u32 v{t0}, v{t2}, 3, v{t0}")
    for ct in range(4):
        a(f"v_add_u32 v{t1}, {32 * ct}, v{t0}")
        a(f"v_and_b32 v{t1}, 127, v{t1}")
        a(f"v_add_u32 v{vA[ct]}, v{t3}, v{t1}")
    for T in range(2):
        for ct in range(4):
            for i in range(4):
                a(f"v_mov_b32 v{ACC[T][ct] + i}, 0")
    if wait_wo:
        common.stamp(a, 1)
        c.wait_vm([f"wo{k}" for k in range(20)])
        a("s_barrier")
        common.stamp(a, 2)
    shifted = [0]

    def reads(k):
        p = k & 1
        off = lds_of(k)
        if off - shifted[0] + 2048 > 65535 - 0:
            for ct in range(4):
                a(f"v_add_u32 v{vA[ct]}, 40960, v{vA[ct]}")
            shifted[0] += 40960
        ops = []
        for ct in range(4):
            for h in range(2):
                ops.append(f"ds_read_b64_tr_b16 {vr(WFR[p][ct] + 2 * h, 2)}, v{vA[ct]} offset:{off - shifted[0] + 2048 * h}")
        return ops

    for s in reads(0):
        c.ds(s)
    for k in range(20):
        p = k & 1
        rd = reads(k + 1) if k < 19 else []
        c.wait_vm(f"o{k}")
        a(f"s_waitcnt lgkmcnt(0)")
        i = 0
        for ct in range(4):
            for T in range(2):
                a(f"v_mfma_f32_16x16x32_bf16 {vr(ACC[T][ct], 4)}, {vr(WFR[p][ct], 4)}, {vr(OF[T][k], 4)}, {vr(ACC[T][ct], 4)}")
                if rd:
                    c.ds(rd.pop(0))
    common.stamp(a, 3 if wait_wo else 8)
    a("s_barrier")
    a(f"v_and_b32 v{t0}, 15, v0")
    a(f"v_lshrrev_b32 v{t1}, 5, v0")
    a(f"v_bfe_u32 v{t2}, v0, 4, 1")
    a(f"v_and_b32 v{t3}, 7, v0")
    a(f"s_lshl_b32 s{S_T0}, s{S_WAVE}, 12")
    a(f"v_lshl_add_u32 v{t0}, v{t0}, 7, s{S_T0}")
    a(f"v_lshl_add_u32 v{t0}, v{t2}, 3, v{t0}")
    PKS = [OF[0][0], OF[0][1], OF[0][2], OF[0][3]]
    for ct in range(4):
        a(f"v_add_u32 v{t2}, {2 * ct}, v{t1}")
        a(f"v_xor_b32 v{t2}, v{t2}, v{t3}")
        a(f"v_lshl_add_u32 v{vA[ct]}, v{t2}, 4, v{t0}")
    for T in range(2):
        for ct in range(4):
            pk = PKS[ct] + 2 * T
            a(f"v_cvt_pk_bf16_f32 v{pk}, v{ACC[T][ct]}, v{ACC[T][ct] + 1}")
            a(f"v_cvt_pk_bf16_f32 v{pk + 1}, v{ACC[T][ct] + 2}, v{ACC[T][ct] + 3}")
            c.ds(f"ds_write_b64 v{vA[ct]}, {vr(pk, 2)} offset:{T * 2048}")
    a(f"v_lshrrev_b32 v{t0}, 3, v0")
    a(f"v_and_b32 v{t1}, 7, v0")
    a(f"v_xor_b32 v{t2}, v{t1}, v{t0}")
    a(f"v_lshlrev_b32 v{t2}, 4, v{t2}")
    a(f"v_lshl_add_u32 v{t2}, v{t0}, 7, v{t2}")
    a(f"v_add_u32 v{t2}, s{S_T0}, v{t2}")
    a(f"s_lshl_b32 s{S_T1}, s{S_RB}, 7")
    a(f"s_lshl_b32 s{S_T2}, s{S_WAVE}, 5")
    a(f"s_add_u32 s{S_T1}, s{S_T1}, s{S_T2}")
    a(f"s_mul_i32 s{S_T1}, s{S_T1}, 2560")
    a(f"s_lshl_b32 s{S_T2}, s{S_CB}, 7")
    a(f"s_add_u32 s{S_T1}, s{S_T1}, s{S_T2}")
    a(f"v_mul_u32_u24 v{t0}, 2560, v{t0}")
    a(f"v_lshl_add_u32 v{t0}, v{t1}, 4, v{t0}")
    a(f"v_add_u32 v{t0}, s{S_T1}, v{t0}")
    c.wait_lg0()
    RB_ = [OF[1][0], OF[1][1], OF[1][2], OF[1][3]]
    for i in range(4):
        c.ds(f"ds_read_b128 {vr(RB_[i], 4)}, v{t2} offset:{i * 1024}", f"rb{i}")
    for i in range(4):
        c.wait_lg(f"rb{i}")
        a(f"s_mov_b32 s{S_T1}, {i * 8 * 2560}")
        c.vmem(f"buffer_store_dwordx4 {vr(RB_[i], 4)}, v{t0}, s[{SRD_OUT}:{SRD_OUT + 3}], s{S_T1} offen")


def gen_a1_full(a):
    a_ids(a)
    gen_a1(a)


def a2_cb(a):
    a(f"s_and_b32 s{S_T0}, s{S_HP}, 7")
    a(f"s_lshr_b32 s{S_CB}, s{S_HP}, 3")
    a(f"s_mul_i32 s{S_CB}, s{S_CB}, 5")
    a(f"s_add_u32 s{S_CB}, s{S_CB}, s{S_T0}")
    a(f"s_cmp_ge_u32 s{S_T0}, 5")
    a(f"s_cselect_b32 s{S_CB}, 0, s{S_CB}")


def a2_skip(a, skip_label):
    a(f"s_and_b32 s{S_T0}, s{S_HP}, 7")
    a(f"s_cmp_ge_u32 s{S_T0}, 5")
    a(f"s_cbranch_scc1 {skip_label}")


def gen_a2_full(a):
    a_ids(a)
    end = a.newlabel("a2end")
    a2_cb(a)
    a2_skip(a, end)
    c = Ctx(a)
    al = Alloc(1, 256)
    vM, vX, t0, t1, t2 = (al.get(n) for n in ("m", "x", "t0", "t1", "t2"))
    make_srd(a, SRD_O, S_WS, SZ, add=OFF_O)
    a2_wo_setup(a, vM, vX, t0, t1, t2)
    gen_a2_wo_dma(a, c, vM, vX, t0, range(20), lambda ks: ks * 4096)
    gen_a2_main(a, c, al)
    a.label(end)
```

```python
from common import *
import common

S_GAM, S_J = 4, 5
SRD0, SRD1, SRD2, SRD3 = 40, 44, 48, 52
S_HI = 56
S_T0, S_T1, S_T2, S_T3 = 57, 58, 59, 60


def b_ids(a):
    a(f"s_lshr_b32 s{S_GAM}, s{S_WG}, 4")
    a(f"s_and_b32 s{S_J}, s{S_WG}, 15")
    a(f"s_mov_b32 s{S_HI}, 0xffff0000")


def gen_b1(a, sc1=""):
    c = Ctx(a)
    al = Alloc(1, 256)
    v_co, v_tq, v_base, v_basem, v_t = (al.get(n) for n in ("co", "tq", "base", "basem", "t"))
    v_w = al.get("woff")
    v_lw = al.get("lw")
    v_lr0, v_lr1, v_st = al.get("lr0"), al.get("lr1"), al.get("st")
    KR = [al.get(f"kr{i}", 4, 2) for i in range(7)]
    VR = [al.get(f"vr{i}", 4, 2) for i in range(4)]
    WR = [al.get(f"wr{i}", 4, 2) for i in range(4)]
    Wf = [al.get(f"wf{i}", 2, 2) for i in range(4)]
    Kf = [al.get(f"kf{i}", 2, 2) for i in range(7)]
    Vf = [al.get(f"vf{i}", 2, 2) for i in range(4)]
    AC = [al.get(f"ac{i}", 2, 2) for i in range(4)]
    PK = [al.get(f"pk{i}", 2, 2) for i in range(4)]
    RD = [al.get(f"rd{i}", 4, 2) for i in range(4)]

    make_srd(a, SRD0, S_K, SZ)
    make_srd(a, SRD1, S_V, SZ)
    make_srd(a, SRD2, S_SHK, D * 4 * 2)
    make_srd(a, SRD3, S_WS, SZ, add=OFF_U)
    a(f"v_and_b32 v{v_co}, 7, v0")
    a(f"v_lshrrev_b32 v{v_tq}, 3, v0")
    a(f"s_lshl_b32 s{S_T0}, s{S_J}, 7")
    a(f"s_lshl_b32 s{S_T1}, s{S_WAVE}, 5")
    a(f"s_add_u32 s{S_T0}, s{S_T0}, s{S_T1}")
    a(f"s_mul_i32 s{S_T1}, s{S_T0}, 1280")
    a(f"s_lshl_b32 s{S_T2}, s{S_GAM}, 7")
    a(f"s_add_u32 s{S_T1}, s{S_T1}, s{S_T2}")
    a(f"v_mul_u32_u24 v{v_base}, 5120, v{v_tq}")
    a(f"v_lshl_add_u32 v{v_base}, v{v_co}, 4, v{v_base}")
    a(f"v_add_u32 v{v_base}, s{S_T1}, v{v_base}")
    a(f"v_lshl_add_u32 v{v_t}, v{v_tq}, 2, s{S_T0}")
    a(f"v_subrev_u32 v{v_basem}, 3840, v{v_base}")
    a(f"v_cmp_eq_u32 vcc, 0, v{v_t}")
    a(f"v_mov_b32 v{v_t}, 0x80000000")
    a(f"v_cndmask_b32 v{v_basem}, v{v_basem}, v{v_t}, vcc")
    a(f"s_lshl_b32 s{S_T2}, s{S_GAM}, 9")
    a(f"v_lshl_add_u32 v{v_w}, v{v_co}, 6, s{S_T2}")
    for i in range(4):
        c.vmem(f"buffer_load_dwordx4 {vr(WR[i], 4)}, v{v_w}, s[{SRD2}:{SRD2 + 3}], 0 offen offset:{16 * i}", "w")
    for i in range(3):
        c.vmem(f"buffer_load_dwordx4 {vr(KR[i], 4)}, v{v_basem}, s[{SRD0}:{SRD0 + 3}], 0 offen offset:{1280 * i}", "k")
    for i in range(4):
        c.vmem(f"buffer_load_dwordx4 {vr(KR[3 + i], 4)}, v{v_base}, s[{SRD0}:{SRD0 + 3}], 0 offen offset:{1280 * i}", "k")
    for i in range(4):
        c.vmem(f"buffer_load_dwordx4 {vr(VR[i], 4)}, v{v_base}, s[{SRD1}:{SRD1 + 3}], 0 offen offset:{1280 * i}", "v")
    a(f"s_lshl_b32 s{S_T2}, s{S_WAVE}, 6")
    a(f"v_lshl_add_u32 v{v_t}, v{v_tq}, 3, s{S_T2}")
    a(f"v_lshl_add_u32 v{v_t}, v{v_co}, 4, v{v_t}")
    a(f"v_and_b32 v{v_t}, 255, v{v_t}")
    a(f"v_lshl_add_u32 v{v_lw}, v{v_co}, 11, v{v_t}")
    a(f"v_and_b32 v{v_t}, 15, v0")
    a(f"v_lshrrev_b32 v{v_st}, 4, v0")
    a(f"s_lshl_b32 s{S_T2}, s{S_WAVE}, 1")
    a(f"v_add_u32 v{v_lr0}, s{S_T2}, v{v_t}")
    a(f"v_add_u32 v{v_lr1}, 1, v{v_lr0}")
    a(f"v_and_b32 v{v_lr0}, 15, v{v_lr0}")
    a(f"v_and_b32 v{v_lr1}, 15, v{v_lr1}")
    a(f"v_lshlrev_b32 v{v_lr0}, 4, v{v_lr0}")
    a(f"v_lshlrev_b32 v{v_lr1}, 4, v{v_lr1}")
    a(f"s_lshl_b32 s{S_T2}, s{S_WAVE}, 12")
    a(f"v_lshl_add_u32 v{v_lr0}, v{v_st}, 8, v{v_lr0}")
    a(f"v_lshl_add_u32 v{v_lr1}, v{v_st}, 8, v{v_lr1}")
    a(f"v_add_u32 v{v_lr0}, s{S_T2}, v{v_lr0}")
    a(f"v_add_u32 v{v_lr1}, s{S_T2}, v{v_lr1}")
    a(f"s_lshl_b32 s{S_T2}, s{S_GAM}, 6")
    a(f"s_lshl_b32 s{S_T3}, s{S_WAVE}, 4")
    a(f"s_add_u32 s{S_T2}, s{S_T2}, s{S_T3}")
    a(f"s_lshl_b32 s{S_T2}, s{S_T2}, 12")
    a(f"s_lshl_b32 s{S_T3}, s{S_J}, 8")
    a(f"s_add_u32 s{S_T2}, s{S_T2}, s{S_T3}")
    a(f"v_lshlrev_b32 v{v_st}, 12, v{v_st}")
    a(f"v_lshl_add_u32 v{v_st}, v{v_t}, 4, v{v_st}")
    a(f"v_add_u32 v{v_st}, s{S_T2}, v{v_st}")
    common.stamp(a, 1)
    c.wait_vm("v")
    common.stamp(a, 2)
    for p in range(4):
        d = WR[p]
        a(f"v_lshlrev_b32 v{Wf[0]}, 16, v{d}")
        a(f"v_lshlrev_b32 v{Wf[0] + 1}, 16, v{d + 2}")
        a(f"v_and_b32 v{Wf[1]}, s{S_HI}, v{d}")
        a(f"v_and_b32 v{Wf[1] + 1}, s{S_HI}, v{d + 2}")
        a(f"v_lshlrev_b32 v{Wf[2]}, 16, v{d + 1}")
        a(f"v_lshlrev_b32 v{Wf[2] + 1}, 16, v{d + 3}")
        a(f"v_and_b32 v{Wf[3]}, s{S_HI}, v{d + 1}")
        a(f"v_and_b32 v{Wf[3] + 1}, s{S_HI}, v{d + 3}")
        for i in range(7):
            a(f"v_lshlrev_b32 v{Kf[i]}, 16, v{KR[i] + p}")
            a(f"v_and_b32 v{Kf[i] + 1}, s{S_HI}, v{KR[i] + p}")
        for t in range(4):
            a(f"v_pk_mul_f32 {vr(AC[t], 2)}, {vr(Kf[t + 3], 2)}, {vr(Wf[0], 2)}")
        for i in range(4):
            a(f"v_lshlrev_b32 v{Vf[i]}, 16, v{VR[i] + p}")
            a(f"v_and_b32 v{Vf[i] + 1}, s{S_HI}, v{VR[i] + p}")
        for jx in range(1, 4):
            for t in range(4):
                a(f"v_pk_fma_f32 {vr(AC[t], 2)}, {vr(Kf[t + 3 - jx], 2)}, {vr(Wf[jx], 2)}, {vr(AC[t], 2)}")
        for t in range(4):
            a(f"v_pk_mul_f32 {vr(AC[t], 2)}, {vr(AC[t], 2)}, {vr(Vf[t], 2)}")
        pa, pb = PK[2 * (p & 1)], PK[2 * (p & 1) + 1]
        a(f"v_cvt_pk_bf16_f32 v{pa}, v{AC[0]}, v{AC[1]}")
        a(f"v_cvt_pk_bf16_f32 v{pa + 1}, v{AC[2]}, v{AC[3]}")
        a(f"v_cvt_pk_bf16_f32 v{pb}, v{AC[0] + 1}, v{AC[1] + 1}")
        a(f"v_cvt_pk_bf16_f32 v{pb + 1}, v{AC[2] + 1}, v{AC[3] + 1}")
        c.ds(f"ds_write_b64 v{v_lw}, {vr(pa, 2)} offset:{(2 * p) * 256}")
        c.ds(f"ds_write_b64 v{v_lw}, {vr(pb, 2)} offset:{(2 * p + 1) * 256}")
    c.wait_lg0()
    a("s_barrier")
    common.stamp(a, 3)
    for i in range(4):
        c.ds(f"ds_read_b128 {vr(RD[i], 4)}, v{v_lr0 if i < 2 else v_lr1} offset:{i * 1024}", f"r{i}")
    for i in range(4):
        c.wait_lg(f"r{i}")
        a(f"s_mov_b32 s{S_T0}, {i * 4 * 4096}")
        c.vmem(f"buffer_store_dwordx4 {vr(RD[i], 4)}, v{v_st}, s[{SRD3}:{SRD3 + 3}], s{S_T0} offen {sc1}")
    return al.next


U_PAD, K_PAD = 160, 96
K_OFF = U_PAD + 4096
Y_OFF = K_OFF + K_PAD + 4096
CHS = Y_OFF + 4096
B2_BASE = 16384
SRD4 = 72
S_D, S_LB, S_CH = 61, 68, 69
S_M1, S_M2, S_M3 = 62, 64, 66


def gen_b2_pre(a):
    v_t, v_t2, v_g, v_dma = 1, 2, 3, 4
    Zr = 6
    a(f"s_lshl_b32 s{S_CH}, s{S_GAM}, 6")
    a(f"s_lshl_b32 s{S_T1}, s{S_J}, 2")
    a(f"s_add_u32 s{S_CH}, s{S_CH}, s{S_T1}")
    a(f"s_add_u32 s{S_CH}, s{S_CH}, s{S_WAVE}")
    a(f"s_lshr_b32 s{S_T1}, s{S_CH}, 1")
    a(f"s_lshl_b32 s{S_T1}, s{S_T1}, 2")
    a(f"s_load_dword s{S_D}, s[{S_SSMD}:{S_SSMD + 1}], s{S_T1}")
    make_srd(a, SRD4, S_SSMK, SZ)
    a(f"s_mul_i32 s{S_LB}, s{S_WAVE}, {CHS}")
    a(f"s_add_u32 s{S_LB}, s{S_LB}, {B2_BASE}")
    a(f"s_lshl_b32 s{S_T2}, s{S_CH}, 12")
    a(f"v_lshl_add_u32 v{v_dma}, v0, 4, s{S_T2}")
    for i in range(4):
        a(f"s_add_u32 m0, s{S_LB}, {K_OFF + K_PAD + 1024 * i}")
        a(f"s_mov_b32 s{S_T3}, {1024 * i}")
        a(f"buffer_load_dwordx4 v{v_dma}, s[{SRD4}:{SRD4 + 3}], s{S_T3} offen lds")
    a(f"v_and_b32 v{v_t}, 15, v0")
    a(f"v_lshlrev_b32 v{v_t2}, 4, v{v_t}")
    a(f"v_add_u32 v{v_g}, {K_OFF - 160}, v{v_t2}")
    a(f"v_cmp_gt_u32 vcc, 10, v{v_t}")
    a(f"v_cndmask_b32 v{v_t2}, v{v_g}, v{v_t2}, vcc")
    a(f"v_add_u32 v{v_t2}, s{S_LB}, v{v_t2}")
    for i in range(4):
        a(f"v_mov_b32 v{Zr + i}, 0")
    a(f"ds_write_b128 v{v_t2}, {vr(Zr, 4)}")
    a("s_waitcnt lgkmcnt(0)")
    a(f"s_and_b32 s{S_T1}, s{S_CH}, 1")
    a(f"s_lshl_b32 s{S_T2}, s{S_D}, 16")
    a(f"s_and_b32 s{S_D}, s{S_D}, s{S_HI}")
    a(f"s_cmp_eq_u32 s{S_T1}, 0")
    a(f"s_cselect_b32 s{S_D}, s{S_T2}, s{S_D}")


class B2:
    def __init__(self, a, sc1_ld="", sc1_st=""):
        self.a, self.sc1_ld, self.sc1_st = a, sc1_ld, sc1_st
        self.c = Ctx(a)
        al = self.al = Alloc(1, 240)
        (self.v_g, self.v_t, self.v_dma, self.v_au, self.v_ak, self.v_ae, self.v_yw, self.v_yr, self.v_t2) = (
            al.get(n) for n in ("g", "t", "dma", "au", "ak", "ae", "yw", "yr", "t2"))
        self.KF = [al.get(f"K{n}", 4, 2) for n in range(16)]
        self.UF = [al.get(f"U{f}", 4, 2) for f in range(32)]
        self.Z = [al.get(f"Z{i}", 4, 2) for i in range(4)]
        self.ZT = [al.get(f"zt{i}") for i in range(3)]
        self.UE = [al.get(f"ue{i}") for i in range(2)]
        self.YP = [al.get(f"yp{i}") for i in range(4)]
        self.PKD = [al.get(f"pkd{i}") for i in range(2)]
        self.YO = al.get("yo", 4, 2)

    def mid(self):
        a, c = self.a, self.c
        v_g, v_t, v_t2, v_au, v_ak = self.v_g, self.v_t, self.v_t2, self.v_au, self.v_ak
        a(f"v_lshrrev_b32 v{v_g}, 4, v0")
        a(f"v_bfe_u32 v{v_t}, v0, 2, 2")
        a(f"v_and_b32 v{v_t2}, 3, v0")
        a(f"v_lshlrev_b32 v{v_au}, 3, v{v_t2}")
        a(f"v_lshlrev_b32 v{v_ak}, 3, v{v_t}")
        a(f"v_sub_u32 v{v_au}, v{v_au}, v{v_ak}")
        a(f"v_lshl_add_u32 v{v_ak}, v{v_g}, 6, v{v_ak}")
        a(f"v_lshlrev_b32 v{v_g}, 6, v{v_g}")
        a(f"v_sub_u32 v{v_au}, v{v_au}, v{v_g}")
        a(f"v_lshl_add_u32 v{v_ak}, v{v_t2}, 5, v{v_ak}")
        a(f"s_add_u32 s{S_T1}, s{S_LB}, {U_PAD + 96 - 32}")
        a(f"v_add_u32 v{v_au}, s{S_T1}, v{v_au}")
        a(f"s_add_u32 s{S_T1}, s{S_LB}, {K_OFF}")
        a(f"v_add_u32 v{v_ak}, s{S_T1}, v{v_ak}")
        a(f"s_add_u32 s{S_T1}, s{S_LB}, {U_PAD}")
        a(f"v_lshl_add_u32 v{self.v_ae}, v0, 1, s{S_T1}")
        a(f"s_add_u32 s{S_T1}, s{S_LB}, {Y_OFF}")
        a(f"v_lshl_add_u32 v{self.v_yw}, v0, 1, s{S_T1}")
        a(f"v_lshl_add_u32 v{self.v_yr}, v0, 4, s{S_T1}")
        a(f"s_lshl_b32 s{S_T2}, s{S_CH}, 12")
        a(f"v_lshl_add_u32 v{self.v_dma}, v0, 4, s{S_T2}")
        make_srd(a, SRD0, S_WS, SZ, add=OFF_U)
        make_srd(a, SRD2, S_WS, SZ, add=OFF_Y)
        a(f"s_mov_b32 s{S_M1}, 0")
        a(f"s_mov_b32 s{S_M1 + 1}, 0x80000000")
        a(f"s_mov_b32 s{S_M2}, 0")
        a(f"s_mov_b32 s{S_M2 + 1}, 0xc0000000")
        a(f"s_mov_b32 s{S_M3}, 0")
        a(f"s_mov_b32 s{S_M3 + 1}, 0xe0000000")
        for i in range(4):
            a(f"v_mov_b32 v{self.Z[3] + i}, 0")
        a("s_waitcnt vmcnt(0)")
        for n in range(16):
            c.ds(f"ds_read_b64_tr_b16 {vr(self.KF[n], 2)}, v{v_ak} offset:{256 * n}", f"K{n}")
            c.ds(f"ds_read_b64_tr_b16 {vr(self.KF[n] + 2, 2)}, v{v_ak} offset:{256 * n + 32}", f"K{n}")

    def main(self):
        a, c = self.a, self.c
        KF, UF, Z, ZT, UE, YP, PKD, YO = self.KF, self.UF, self.Z, self.ZT, self.UE, self.YP, self.PKD, self.YO
        v_au, v_ae, v_yw, v_yr, v_dma = self.v_au, self.v_ae, self.v_yw, self.v_yr, self.v_dma
        for i in range(4):
            a(f"s_add_u32 m0, s{S_LB}, {U_PAD + 1024 * i}")
            a(f"s_mov_b32 s{S_T3}, {1024 * i}")
            c.vmem(f"buffer_load_dwordx4 v{v_dma}, s[{SRD0}:{SRD0 + 3}], s{S_T3} offen {self.sc1_ld} lds", f"u{i}")
        loadedU, waited = set(), set()

        def loadU(f):
            if f in loadedU or f > 31:
                return
            loadedU.add(f)
            tag = f"u{(64 * f + 63) // 512}"
            if tag not in waited:
                c.wait_vm(tag)
                waited.add(tag)
            c.ds(f"ds_read_b64_tr_b16 {vr(UF[f], 2)}, v{v_au} offset:{128 * f + 32}", f"U{f}")
            c.ds(f"ds_read_b64_tr_b16 {vr(UF[f] + 2, 2)}, v{v_au} offset:{128 * f}", f"U{f}")

        def epi_ops(cp):
            z, zp = Z[cp % 4], Z[(cp - 1) % 4]
            ue = UE[cp % 2]
            y = YP[cp % 4]
            ops = []
            ops.append(lambda: c.ds(f"ds_read_u16_d16_hi v{ue}, v{v_ae} offset:{128 * cp}", f"E{cp}"))
            ops.append(lambda: a(f"v_cndmask_b32 v{ZT[2]}, v{z + 3}, v{zp + 3}, s[{S_M3}:{S_M3 + 1}]"))
            ops.append(lambda: a(f"v_cndmask_b32 v{ZT[1]}, v{z + 2}, v{zp + 2}, s[{S_M2}:{S_M2 + 1}]"))
            ops.append(lambda: a(f"v_cndmask_b32 v{ZT[0]}, v{z + 1}, v{zp + 1}, s[{S_M1}:{S_M1 + 1}]"))
            ops.append(lambda: a(f"v_add_f32_dpp v{ZT[1]}, v{ZT[2]}, v{ZT[1]} wave_ror:1 row_mask:0xf bank_mask:0xf"))
            ops.append(lambda: a(f"v_add_f32_dpp v{ZT[0]}, v{ZT[1]}, v{ZT[0]} wave_ror:1 row_mask:0xf bank_mask:0xf"))
            ops.append(lambda: a(f"v_add_f32_dpp v{y}, v{ZT[0]}, v{z} wave_ror:1 row_mask:0xf bank_mask:0xf"))

            def fin():
                c.wait_lg(f"E{cp}")
                a(f"v_fma_f32 v{y}, v{ue}, s{S_D}, v{y}")
            ops.append(fin)
            if cp & 1:
                pk = PKD[(cp >> 1) & 1]
                y0 = YP[(cp - 1) % 4]

                def st():
                    a(f"v_cvt_pk_bf16_f32 v{pk}, v{y0}, v{y}")
                    c.ds(f"ds_write_b16 v{v_yw}, v{pk} offset:{128 * (cp - 1)}", f"W{cp}")
                    c.ds(f"ds_write_b16_d16_hi v{v_yw}, v{pk} offset:{128 * cp}", f"W{cp}")
                ops.append(st)
            if cp % 8 == 7:
                q = cp // 8

                def out():
                    c.ds(f"ds_read_b128 {vr(YO, 4)}, v{v_yr} offset:{1024 * q}", f"O{q}")
                    c.wait_lg(f"O{q}")
                    a(f"s_mov_b32 s{S_T3}, {1024 * q}")
                    c.vmem(f"buffer_store_dwordx4 {vr(YO, 4)}, v{v_dma}, s[{SRD2}:{SRD2 + 3}], s{S_T3} offen {self.sc1_st}", "st")
                ops.append(out)
            return ops

        loadU(0)
        loadU(1)
        pending = []
        for cp in range(32):
            N = (cp + 2) // 2
            if cp in (1, 16):
                common.stamp(a, 5 if cp == 1 else 6)
            loadU(cp + 2)
            c.wait_lg([f"U{cp}", f"K{N - 1}"])
            z = Z[cp % 4]
            ops = list(pending)
            per = (len(ops) + N - 1) // N
            for n in range(N):
                src_c = "0" if n == 0 else vr(z, 4)
                a(f"v_mfma_f32_16x16x32_bf16 {vr(z, 4)}, {vr(KF[n], 4)}, {vr(UF[cp - 2 * n], 4)}, {src_c}")
                for _ in range(per):
                    if ops:
                        ops.pop(0)()
            while ops:
                ops.pop(0)()
            pending = epi_ops(cp - 1) if cp >= 1 else []
        for op in pending:
            op()
        for op in epi_ops(31):
            op()


def gen_b2(a, sc1_ld="", sc1_st=""):
    gen_b2_pre(a)
    b = B2(a, sc1_ld, sc1_st)
    b.mid()
    b.main()


def gen_b3(a, sc1_ld=""):
    c = Ctx(a)
    al = Alloc(1, 256)
    v_o, v_tt, v_t, v_q, v_dma, v_out = (al.get(n) for n in ("o", "tt", "t", "q", "dma", "out"))
    v_t2 = al.get("t2")
    v_la = [al.get(f"la{i}") for i in range(4)]
    QR = [al.get(f"q{i}", 4, 2) for i in range(4)]
    YV = [al.get(f"y{i}", 8, 2) for i in range(4)]
    QF = al.get("qf", 8, 2)
    OUT = [al.get(f"o{i}", 4, 2) for i in range(2)]
    make_srd(a, SRD0, S_Q, SZ)
    make_srd(a, SRD1, S_WS, SZ, add=OFF_Y)
    make_srd(a, SRD2, S_OUT, 2 * SZ)
    a(f"v_and_b32 v{v_o}, 7, v0")
    a(f"v_lshrrev_b32 v{v_tt}, 3, v0")
    a(f"s_lshl_b32 s{S_T0}, s{S_J}, 7")
    a(f"s_lshl_b32 s{S_T1}, s{S_WAVE}, 5")
    a(f"s_add_u32 s{S_T0}, s{S_T0}, s{S_T1}")
    a(f"v_add_u32 v{v_t}, s{S_T0}, v{v_tt}")
    a(f"s_lshl_b32 s{S_T2}, s{S_GAM}, 7")
    a(f"v_lshl_add_u32 v{v_t2}, v{v_o}, 4, s{S_T2}")
    a(f"v_mul_u32_u24 v{v_q}, 1280, v{v_t}")
    a(f"v_add_u32 v{v_q}, v{v_q}, v{v_t2}")
    a(f"v_mul_u32_u24 v{v_out}, 2560, v{v_t}")
    a(f"v_add_u32 v{v_out}, v{v_out}, v{v_t2}")
    a(f"v_add_u32 v{v_out}, 1280, v{v_out}")
    for i in range(4):
        a(f"s_mov_b32 s{S_T1}, {i * 8 * 1280}")
        c.vmem(f"buffer_load_dwordx4 {vr(QR[i], 4)}, v{v_q}, s[{SRD0}:{SRD0 + 3}], s{S_T1} offen", f"q{i}")
    a(f"v_and_b32 v{v_t}, 15, v0")
    a(f"v_lshrrev_b32 v{v_t2}, 4, v0")
    a(f"s_lshl_b32 s{S_T1}, s{S_GAM}, 6")
    a(f"s_lshl_b32 s{S_T2}, s{S_WAVE}, 4")
    a(f"s_add_u32 s{S_T1}, s{S_T1}, s{S_T2}")
    a(f"s_lshl_b32 s{S_T1}, s{S_T1}, 12")
    a(f"s_lshl_b32 s{S_T2}, s{S_J}, 8")
    a(f"s_add_u32 s{S_T1}, s{S_T1}, s{S_T2}")
    a(f"v_lshlrev_b32 v{v_t2}, 12, v{v_t2}")
    a(f"v_add_u32 v{v_t2}, s{S_T1}, v{v_t2}")
    a(f"s_lshl_b32 s{S_T2}, s{S_WAVE}, 1")
    return c, al, dict(v_t=v_t, v_t2=v_t2, v_dma=v_dma, v_o=v_o, v_tt=v_tt, v_la=v_la, QR=QR, YV=YV, QF=QF, OUT=OUT,
                       v_out=v_out, sc1_ld=sc1_ld)


def gen_b3_rest(a, c, al, r):
    v_t, v_t2, v_dma, v_o, v_tt, v_la = r["v_t"], r["v_t2"], r["v_dma"], r["v_o"], r["v_tt"], r["v_la"]
    QR, YV, QF, OUT, v_out, sc1_ld = r["QR"], r["YV"], r["QF"], r["OUT"], r["v_out"], r["sc1_ld"]
    for half in range(2):
        a(f"v_subrev_u32 v{v_dma}, s{S_T2}, v{v_t}")
        if half:
            a(f"v_subrev_u32 v{v_dma}, 1, v{v_dma}")
        a(f"v_and_b32 v{v_dma}, 15, v{v_dma}")
        a(f"v_lshl_add_u32 v{v_dma}, v{v_dma}, 4, v{v_t2}")
        for ii in range(2):
            i = 2 * half + ii
            a(f"s_lshl_b32 s{S_T3}, s{S_WAVE}, 12")
            a(f"s_add_u32 m0, s{S_T3}, {i * 1024}")
            a(f"s_mov_b32 s{S_T3}, {i * 4 * 4096}")
            c.vmem(f"buffer_load_dwordx4 v{v_dma}, s[{SRD1}:{SRD1 + 3}], s{S_T3} offen {sc1_ld} lds", "y")
    a(f"s_lshl_b32 s{S_T3}, s{S_WAVE}, 6")
    for i in range(4):
        a(f"v_lshl_add_u32 v{v_t}, v{v_o}, 4, s{S_T3}")
        if i:
            a(f"v_add_u32 v{v_t}, {16 * i}, v{v_t}")
        a(f"v_and_b32 v{v_t}, 255, v{v_t}")
        a(f"v_lshl_add_u32 v{v_t}, v{v_tt}, 1, v{v_t}")
        a(f"v_lshl_add_u32 v{v_la[i]}, v{v_o}, 11, v{v_t}")
    c.wait_vm("y")
    a("s_barrier")
    for i in range(4):
        for jj in range(8):
            c.ds(f"ds_read_u16_d16_hi v{YV[i] + jj}, v{v_la[i]} offset:{jj * 256}", f"y{i}")
    for i in range(4):
        for p in range(4):
            a(f"v_lshlrev_b32 v{QF + 2 * p}, 16, v{QR[i] + p}")
            a(f"v_and_b32 v{QF + 2 * p + 1}, s{S_HI}, v{QR[i] + p}")
        c.wait_lg(f"y{i}")
        for p in range(4):
            a(f"v_pk_mul_f32 {vr(QF + 2 * p, 2)}, {vr(QF + 2 * p, 2)}, {vr(YV[i] + 2 * p, 2)}")
        o = OUT[i & 1]
        for p in range(4):
            a(f"v_cvt_pk_bf16_f32 v{o + p}, v{QF + 2 * p}, v{QF + 2 * p + 1}")
        a(f"s_mov_b32 s{S_T1}, {i * 8 * 2560}")
        c.vmem(f"buffer_store_dwordx4 {vr(o, 4)}, v{v_out}, s[{SRD2}:{SRD2 + 3}], s{S_T1} offen")
    return al.next
```

```python
from asmlib import *

S, D = 2048, 640
KNAME = "concat_heads__sliding_local_dilated__ssm_conv_h3__prompt"
OFF_O = 0
OFF_U = 0x280000
OFF_Y = 0x500000
OFF_F = 0x780000
SZ = S * D * 2
LDS_BYTES = 81920
NB = 160
NA = 256

S_X, S_WQKV, S_WO, S_Q, S_K, S_V, S_SHK, S_SSMK = 16, 18, 20, 22, 24, 26, 28, 30
S_SSMD, S_OUT, S_DBG, S_WS = 32, 34, 36, 38
S_WG = 2
S_WAVE = 3
V_TID = 0


class Ctx:
    def __init__(self, a):
        self.a = a
        self.vm = []
        self.lg = []

    def __call__(self, t):
        self.a(t)

    def vmem(self, text, tag=None):
        self.a(text)
        self.vm.append(tag)

    def ds(self, text, tag=None):
        self.a(text)
        self.lg.append(tag)

    def _cnt(self, lst, tags):
        if not isinstance(tags, (list, tuple, set)):
            tags = [tags]
        last = -1
        for i, t in enumerate(lst):
            if t in tags:
                last = i
        assert last >= 0, f"tag {tags} not found"
        return len(lst) - 1 - last

    def wait_vm(self, tags):
        n = self._cnt(self.vm, tags)
        self.a(f"s_waitcnt vmcnt({min(n, 63)})")

    def wait_lg(self, tags):
        n = self._cnt(self.lg, tags)
        self.a(f"s_waitcnt lgkmcnt({min(n, 15)})")

    def wait_lg0(self):
        self.a("s_waitcnt lgkmcnt(0)")

    def wait_vm0(self):
        self.a("s_waitcnt vmcnt(0)")


def make_srd(a, dst, base_sgpr, nbytes, add=0):
    if add:
        a(f"s_add_u32 s{dst}, s{base_sgpr}, {hex(add)}")
        a(f"s_addc_u32 s{dst + 1}, s{base_sgpr + 1}, 0")
    else:
        a(f"s_mov_b32 s{dst}, s{base_sgpr}")
        a(f"s_mov_b32 s{dst + 1}, s{base_sgpr + 1}")
    a(f"s_mov_b32 s{dst + 2}, {hex(nbytes)}")
    a(f"s_mov_b32 s{dst + 3}, 0x20000")


def kernel_prologue(a, name, prefetch_bytes=0, end_label=None):
    a("s_load_dwordx16 s[16:31], s[0:1], 0")
    a("s_load_dwordx8 s[32:39], s[0:1], 64")
    if prefetch_bytes:
        a("s_getpc_b64 s[4:5]")
        a("v_lshlrev_b32 v1, 7, v0")
        a(f"v_cmp_gt_u32 vcc, {prefetch_bytes}, v1")
        a("s_and_saveexec_b64 s[6:7], vcc")
        lab = a.newlabel("nopf")
        a(f"s_cbranch_execz {lab}")
        a("global_load_dword v250, v1, s[4:5]")
        a.label(lab)
        a("s_mov_b64 exec, s[6:7]")
    a("v_lshrrev_b32 v1, 6, v0")
    a("v_and_b32 v0, 63, v0")
    a("v_readfirstlane_b32 s3, v1")
    a("s_waitcnt lgkmcnt(0)")


def kernel_descriptor(name, vgprs, sgprs=102):
    vg = max(8, (vgprs + 7) // 8 * 8)
    return f""".section .rodata,"a"
.p2align 6
.amdhsa_kernel {name}
  .amdhsa_next_free_vgpr {vg}
  .amdhsa_next_free_sgpr {sgprs}
  .amdhsa_accum_offset {vg}
  .amdhsa_group_segment_fixed_size 0
  .amdhsa_kernarg_size 96
  .amdhsa_user_sgpr_count 2
  .amdhsa_user_sgpr_kernarg_segment_ptr 1
  .amdhsa_system_sgpr_workgroup_id_x 1
  .amdhsa_float_denorm_mode_32 3
.end_amdhsa_kernel
.text
"""


HEADER = """; Kernarg layout for this problem (96 bytes, ptrs only, base s[0:1]):
"""


OFF_STAMP = 0x800000
STAMPS = False
S_STAMP_SRD = 92
S_STAMP_T = 96


S_ST0 = 82
_stamp_used = set()


def stamp_init(a, kidx):
    if not STAMPS:
        return
    _stamp_used.clear()
    make_srd(a, S_STAMP_SRD, S_WS, 0x100000, add=OFF_STAMP)
    a(f"s_lshl_b32 s98, s2, 7")
    a(f"s_add_u32 s98, s98, {kidx * 65536}")
    for i in range(10):
        a(f"s_mov_b32 s{S_ST0 + i}, 0")


def stamp(a, idx):
    if not STAMPS:
        return
    assert idx < 10
    a(f"s_memrealtime s[{S_STAMP_T}:{S_STAMP_T + 1}]")
    a("s_waitcnt lgkmcnt(0)")
    a(f"s_mov_b32 s{S_ST0 + idx}, s{S_STAMP_T}")


def stamp_flush(a):
    if not STAMPS:
        return
    a("s_waitcnt vmcnt(0)")
    stamp(a, 9)
    lab = a.newlabel("st")
    a(f"s_cmp_lg_u32 s{S_WAVE}, 0")
    a(f"s_cbranch_scc1 {lab}")
    a(f"v_mov_b32 v254, s98")
    a("s_mov_b64 exec, 1")
    for i in range(10):
        a(f"v_mov_b32 v252, s{S_ST0 + i}")
        a(f"buffer_store_dword v252, v254, s[{S_STAMP_SRD}:{S_STAMP_SRD + 3}], 0 offen offset:{i * 8}")
    a("s_waitcnt vmcnt(0)")
    a.label(lab)
```

```python
from common import *
import common

SRD_DBG, SRD_F = 8, 12
S_TAG = 6
S_PC = 7
F_B1, F_B2, F_A1 = 0x0, 0x1000, 0x2000
V_S0, V_S1 = 248, 249
POLL_MAX = 1 << 18


def sync_setup(a):
    make_srd(a, SRD_DBG, S_DBG, 256)
    make_srd(a, SRD_F, S_WS, 0x4000, add=OFF_F)
    a(f"s_mov_b32 s{S_TAG}, 0")


def publish_tag(a):
    skip = a.newlabel("notag")
    a(f"s_or_b32 s{S_PC}, s{S_WG}, s{S_WAVE}")
    a(f"s_cmp_lg_u32 s{S_PC}, 0")
    a(f"s_cbranch_scc1 {skip}")
    a("s_memrealtime s[100:101]")
    a("s_waitcnt lgkmcnt(0)")
    a(f"s_or_b32 s{S_TAG}, s100, 1")
    a(f"v_mov_b32 v{V_S0}, s{S_TAG}")
    a(f"v_mov_b32 v{V_S1}, 0")
    a("s_mov_b64 exec, 1")
    a(f"buffer_store_dword v{V_S0}, v{V_S1}, s[{SRD_DBG}:{SRD_DBG + 3}], 0 offen sc1")
    a("s_mov_b64 exec, -1")
    a.label(skip)


def get_tag(a):
    done, loop = a.newlabel("tagok"), a.newlabel("tagpoll")
    a(f"s_cmp_lg_u32 s{S_TAG}, 0")
    a(f"s_cbranch_scc1 {done}")
    a(f"s_mov_b32 s{S_PC}, 0")
    a(f"v_mov_b32 v{V_S1}, 0")
    a.label(loop)
    a(f"buffer_load_dword v{V_S0}, v{V_S1}, s[{SRD_DBG}:{SRD_DBG + 3}], 0 offen sc1")
    a("s_waitcnt vmcnt(0)")
    a(f"v_readfirstlane_b32 s{S_TAG}, v{V_S0}")
    a(f"s_cmp_lg_u32 s{S_TAG}, 0")
    a(f"s_cbranch_scc1 {done}")
    a("s_sleep 2")
    a(f"s_add_u32 s{S_PC}, s{S_PC}, 1")
    a(f"s_cmp_lt_u32 s{S_PC}, {POLL_MAX}")
    a(f"s_cbranch_scc1 {loop}")
    a.label(done)


def signal(a, s_off):
    skip = a.newlabel("nosig")
    a("s_waitcnt vmcnt(0)")
    a("s_barrier")
    a(f"s_cmp_lg_u32 s{S_WAVE}, 0")
    a(f"s_cbranch_scc1 {skip}")
    get_tag(a)
    a(f"v_mov_b32 v{V_S0}, s{S_TAG}")
    a(f"v_mov_b32 v{V_S1}, 0")
    a("s_mov_b64 exec, 1")
    a(f"buffer_store_dword v{V_S0}, v{V_S1}, s[{SRD_F}:{SRD_F + 3}], s{s_off} offen sc1")
    a("s_mov_b64 exec, -1")
    a.label(skip)


def wait(a, s_off, barrier=True):
    skip, loop, done = a.newlabel("nowait"), a.newlabel("poll"), a.newlabel("polled")
    a(f"s_cmp_lg_u32 s{S_WAVE}, 0")
    a(f"s_cbranch_scc1 {skip}")
    get_tag(a)
    a(f"s_mov_b32 s{S_PC}, 0")
    a(f"v_and_b32 v{V_S1}, 15, v0")
    a(f"v_lshlrev_b32 v{V_S1}, 2, v{V_S1}")
    a.label(loop)
    a(f"buffer_load_dword v{V_S0}, v{V_S1}, s[{SRD_F}:{SRD_F + 3}], s{s_off} offen sc1")
    a("s_waitcnt vmcnt(0)")
    a(f"v_cmp_ne_u32 vcc, s{S_TAG}, v{V_S0}")
    a("s_cmp_eq_u64 vcc, 0")
    a(f"s_cbranch_scc1 {done}")
    a("s_sleep 1")
    a(f"s_add_u32 s{S_PC}, s{S_PC}, 1")
    a(f"s_cmp_lt_u32 s{S_PC}, {POLL_MAX}")
    a(f"s_cbranch_scc1 {loop}")
    a.label(done)
    a.label(skip)
    if barrier:
        a("s_barrier")
```

```python
import sys, os
from common import *
import common, bpath, apath, sync

OPT = dict(PF=0)

def b_role(a):
    bpath.b_ids(a)
    sync.publish_tag(a)
    bpath.gen_b2_pre(a)
    bpath.gen_b1(a, sc1="sc1")
    common.stamp(a, 4)
    S_OFF = 70
    a(f"s_lshl_b32 s{S_OFF}, s{bpath.S_GAM}, 7")
    a(f"s_lshl_b32 s71, s{bpath.S_J}, 2")
    a(f"s_add_u32 s71, s71, s{S_OFF}")
    a(f"s_add_u32 s76, s71, {sync.F_B1}")
    sync.signal(a, 76)
    b2 = bpath.B2(a, sc1_ld="sc1", sc1_st="sc1")
    b2.mid()
    a(f"s_add_u32 s76, s{S_OFF}, {sync.F_B1}")
    sync.wait(a, 76)
    b2.main()
    common.stamp(a, 7)
    a(f"s_add_u32 s76, s71, {sync.F_B2}")
    sync.signal(a, 76)
    c, al, r = bpath.gen_b3(a, sc1_ld="sc1")
    a(f"s_add_u32 s76, s{S_OFF}, {sync.F_B2}")
    sync.wait(a, 76)
    common.stamp(a, 8)
    bpath.gen_b3_rest(a, c, al, r)

def a_role(a):
    apath.a_ids(a)
    vM, vX, t0, t1, t2 = 244, 245, 246, 247, 243
    end = a.newlabel("aend")
    holder = {}
    def mid_hook(a, c):
        skip = a.newlabel("nowo")
        apath.a2_cb(a)
        apath.a2_wo_setup(a, vM, vX, t0, t1, t2)
        apath.a2_skip(a, skip)
        apath.gen_a2_wo_dma(a, Ctx(a), vM, vX, t0, range(5, 20), lambda ks: ks * 4096)
        a.label(skip)
    apath.gen_a1(a, sc1_st="sc1", mid_hook=mid_hook)
    common.stamp(a, 6)
    a(f"s_lshl_b32 s70, s{apath.S_RB}, 7")
    a(f"s_lshl_b32 s71, s{apath.S_HP}, 2")
    a(f"s_add_u32 s71, s71, s70")
    a(f"s_add_u32 s71, s71, {sync.F_A1}")
    sync.signal(a, 71)
    apath.a2_skip(a, end)
    c = Ctx(a)
    apath.gen_a2_wo_dma(a, c, vM, vX, t0, range(0, 5), lambda ks: ks * 4096)
    a(f"s_add_u32 s71, s70, {sync.F_A1}")
    a("s_waitcnt vmcnt(0)")
    sync.wait(a, 71)
    common.stamp(a, 7)
    al = Alloc(1, 243)
    apath.gen_a2_main(a, c, al, sc1_ld="sc1", wait_wo=False)
    a.label(end)

def build(path):
    name = KNAME + "_kernel"
    a = Asm()
    a.raw(f".globl {name}\n.p2align 8\n.type {name},@function")
    a.label(name)
    end, la, start = a.newlabel("end"), a.newlabel("arole"), a.newlabel("start")
    a.label(start)
    a(f"s_cmp_ge_u32 s2, {NB + NA}")
    a(f"s_cbranch_scc1 {end}")
    kernel_prologue(a, "", prefetch_bytes=(f"({end}-{start})" if OPT["PF"] else 0))
    common.stamp_init(a, 0)
    common.stamp(a, 0)
    sync.sync_setup(a)
    a(f"s_cmp_ge_u32 s2, {NB}")
    a(f"s_cbranch_scc1 {la}")
    b_role(a)
    common.stamp_flush(a)
    a(f"s_branch {end}")
    a.label(la)
    a_role(a)
    common.stamp_flush(a)
    a.label(end)
    a("s_endpgm")
    npad = a.pad()
    mv, ms, ma = a.max_regs()
    print(f"{name}: {a.count()} instrs, {npad} pad states, max v{mv} s{ms}", file=sys.stderr)
    out = HEADER + f"; @launch grid=({NB + NA},1,1) block=(256,1,1) lds={LDS_BYTES}\n"
    out += '.amdgcn_target "amdgcn-amd-amdhsa--gfx950"\n.text\n'
    out += a.text() + kernel_descriptor(name, mv + 1)
    open(path, "w").write(out)

if __name__ == "__main__":
    common.STAMPS = bool(int(os.environ.get("STAMPS", "0")))
    OPT["PF"] = int(os.environ.get("PF", "0"))
    build(sys.argv[1])
```
